```python
import torch

def _softmax(x, axis=-1):
    return torch.softmax(x, dim=axis)
def _gelu(x):
    return torch.nn.functional.gelu(x, approximate="tanh")
def _silu(x):
    return torch.nn.functional.silu(x)
def _sigmoid(x):
    return torch.sigmoid(x)
def _layernorm(x, axis=-1, eps=1e-5):
    m = x.mean(dim=axis, keepdim=True)
    v = x.var(dim=axis, keepdim=True, unbiased=False)
    return (x - m) / torch.sqrt(v + eps)
def _scatter_add(tgt, idx, src, axis=0):
    return tgt.clone().index_add_(axis, idx, src)
def _segment_sum(src, seg, n):
    out = torch.zeros((n,) + src.shape[1:], dtype=src.dtype)
    return out.index_add_(0, seg, src)
def _pad(x, pw):
    flat = tuple(v for pair in reversed(pw) for v in pair)
    return torch.nn.functional.pad(x, flat)

kernel_name = 'concat_heads__grouped_kv_mqa__sliding_local_dilated__prompt'

def setup_inputs():

    _w = (lambda a: (lambda t: t.to(torch.bfloat16) if t.is_floating_point() else t)(torch.as_tensor(a)))
    def _A_setup():
        B, S, D, H = 1, 2048, 448, 16
        Dh = D // H
        return {
            "x": _w((lambda *s: torch.randn(*s, dtype=torch.bfloat16) * 0.05)(B, S, D)),
            "wq": _w((lambda *s: torch.randn(*s, dtype=torch.bfloat16) * 3.2)(D, H * Dh)),
            "wk": _w((lambda *s: torch.randn(*s, dtype=torch.bfloat16) * 3.2)(D, Dh)),
            "wv": _w((lambda *s: torch.randn(*s, dtype=torch.bfloat16) * 1.6)(D, Dh)),
            "wo": _w((lambda *s: torch.randn(*s, dtype=torch.bfloat16) * 1.6)(H * Dh, D)),
        }
    _A_in = _A_setup()

    def _B_setup():
        B, S, D = 1, 2048, 448
        return {
            "x": _w((lambda *s: torch.randn(*s, dtype=torch.bfloat16) * 0.1)(B, S, D)),
            "wqkv": _w((lambda *s: torch.randn(*s, dtype=torch.bfloat16) * 0.8)(D, 3 * D)),
            "wo": _w((lambda *s: torch.randn(*s, dtype=torch.bfloat16) * 0.8)(D, D)),
        }
    _B_in = _B_setup()

    return {
        "A_x": _A_in["x"],
        "A_wq": _A_in["wq"],
        "A_wk": _A_in["wk"],
        "A_wv": _A_in["wv"],
        "A_wo": _A_in["wo"],
        "B_x": _B_in["x"],
        "B_wqkv": _B_in["wqkv"],
        "B_wo": _B_in["wo"],
    }

def reference(A_x, A_wq, A_wk, A_wv, A_wo, B_x, B_wqkv, B_wo):
    def _A_ref(x, wq, wk, wv, wo):
        B, S, D = x.shape
        H = 16
        Dh = D // H
        q = (lambda x, *d: x.permute(*d))((x @ wq).reshape(B, S, H, Dh), 0, 2, 1, 3)
        k = x @ wk
        v = x @ wv
        scores = torch.einsum("bhqd,bkd->bhqk", q, k) * (Dh ** -0.5)
        p = _softmax(scores, axis=-1)
        o = torch.einsum("bhqk,bkd->bhqd", p, v)
        return (lambda x, *d: x.permute(*d))(o, 0, 2, 1, 3).reshape(B, S, H * Dh) @ wo

    def _B_ref(x, wqkv, wo):
        B, S, D = x.shape
        H = 16; Dh = D // H
        W, dil = 8, 2
        qkv = (lambda x, *d: x.permute(*d))((x @ wqkv).reshape(B, S, 3, H, Dh), 2, 0, 3, 1, 4)
        q, k, v = qkv[0], qkv[1], qkv[2]
        scale = Dh ** -0.5
        pos = torch.arange(S)
        off = torch.arange(W) * dil
        idx = pos[:, None] - off[None, :]
        mask = idx >= 0
        idx_c = torch.where(mask, idx, 0).reshape(-1)
        kg = k[:, :, idx_c, :].reshape(B, H, S, W, Dh)
        vg = v[:, :, idx_c, :].reshape(B, H, S, W, Dh)
        logits = torch.einsum("bhsd,bhswd->bhsw", q, kg) * scale
        logits = torch.where(mask[None, None, :, :], logits, -1e9)
        attn = _softmax(logits, axis=-1)
        o = torch.einsum("bhsw,bhswd->bhsd", attn, vg)
        return (lambda x, *d: x.permute(*d))(o, 0, 2, 1, 3).reshape(B, S, D) @ wo

    a = _A_ref(A_x, A_wq, A_wk, A_wv, A_wo)
    b = _B_ref(B_x, B_wqkv, B_wo)
    return torch.concatenate([a, b], axis=-1)
```

```python
NAME = "concat_heads__grouped_kv_mqa__sliding_local_dilated__prompt"
OFF_Q = 0x0
OFF_K4 = 0x200000
OFF_VT = 0x220000
OFF_QKVB = 0x300000
OFF_OA = 0x900000
OFF_OB = 0xB00000
XS = 464
WS = 272
WBASE = 128 * XS
GEMM_LDS = WBASE + 224 * WS

L = []
def e(s): L.append("    " + s)
def lab(s): L.append(s + ":")

def srd(dst, lo, hi, off, size):
    e(f"s_add_u32 s{dst}, s{lo}, {off:#x}")
    e(f"s_addc_u32 s{dst+1}, s{hi}, 0")
    e(f"s_and_b32 s{dst+1}, s{dst+1}, 0xffff")
    e(f"s_mov_b32 s{dst+2}, {size:#x}")
    e(f"s_mov_b32 s{dst+3}, 0x00020000")

def kd(name, vgpr=256):
    L.append(f""".section .rodata,"a"
.p2align 6
.amdhsa_kernel {name}
  .amdhsa_next_free_vgpr {vgpr}
  .amdhsa_next_free_sgpr 96
  .amdhsa_accum_offset {vgpr}
  .amdhsa_group_segment_fixed_size 0
  .amdhsa_kernarg_size 88
  .amdhsa_user_sgpr_count 2
  .amdhsa_user_sgpr_kernarg_segment_ptr 1
  .amdhsa_system_sgpr_workgroup_id_x 1
.end_amdhsa_kernel
.text""")

def khead(name):
    L.append(f".globl {name}\n.p2align 8\n.type {name},@function\n{name}:")

def gemm_load_stage(stage, kv):
    for i in range(16):
        e(f"s_mov_b32 s40, {i*8*896 + stage*448}")
        e(f"buffer_load_dwordx4 v[{16+4*i}:{19+4*i}], v1, s[24:27], s40 offen")
    if not kv:
        for i in range(14):
            e(f"s_mul_i32 s40, s36, {i*16 + stage*224}")
            e(f"buffer_load_dwordx4 v[{80+4*i}:{83+4*i}], v3, s[28:31], s40 offen")
    else:
        for i in range(14):
            e(f"s_mov_b32 s40, {(i*16 + stage*224)*56}")
            e(f"buffer_load_dword v{80+2*i}, v3, s[28:31], s40 offen")
            e(f"buffer_load_dword v{81+2*i}, v3, s[44:47], s40 offen")

def gemm_store_stage(kv):
    e("s_waitcnt vmcnt(0)")
    e("s_mov_b64 exec, s[42:43]")
    for i in range(16):
        e(f"ds_write_b128 v2, v[{16+4*i}:{19+4*i}] offset:{i*8*XS}")
    e("s_mov_b64 exec, -1")
    if not kv:
        for i in range(14):
            e(f"ds_write_b128 v4, v[{80+4*i}:{83+4*i}] offset:{i*16*WS}")
    else:
        for i in range(14):
            e(f"v_cndmask_b32 v{80+2*i}, 0, v{80+2*i}, s[48:49]")
            e(f"v_cndmask_b32 v{81+2*i}, 0, v{81+2*i}, s[48:49]")
            e(f"ds_write_b32 v4, v{80+2*i} offset:{i*16*WS}")
            e(f"ds_write_b32 v4, v{81+2*i} offset:{i*16*WS+64}")
    e("s_waitcnt lgkmcnt(0)")
    e("s_barrier")

def gemm_compute(kv):
    def reads(kk, s):
        a = 200 + 16*s; b = a + 8
        e(f"ds_read_b128 v[{a}:{a+3}], v5 offset:{kk*32}")
        if not kv:
            e(f"ds_read_b128 v[{a+4}:{a+7}], v5 offset:{kk*32 + 32*XS}")
        e(f"ds_read_b64_tr_b16 v[{b}:{b+1}], v6 offset:{kk*16*WS}")
        e(f"ds_read_b64_tr_b16 v[{b+2}:{b+3}], v6 offset:{kk*16*WS + 4*WS}")
        e(f"ds_read_b64_tr_b16 v[{b+4}:{b+5}], v6 offset:{kk*16*WS + 64}")
        e(f"ds_read_b64_tr_b16 v[{b+6}:{b+7}], v6 offset:{kk*16*WS + 4*WS + 64}")
    nr = 5 if kv else 6
    reads(0, 0)
    for kk in range(14):
        s = kk & 1
        if kk < 13:
            reads(kk+1, s ^ 1)
            e(f"s_waitcnt lgkmcnt({nr})")
        else:
            e("s_waitcnt lgkmcnt(0)")
        a = 200 + 16*s; b = a + 8
        if not kv:
            for tm in range(2):
                for tn in range(2):
                    acc = 136 + 16*(2*tm+tn)
                    e(f"v_mfma_f32_32x32x16_bf16 v[{acc}:{acc+15}], v[{b+4*tn}:{b+4*tn+3}], v[{a+4*tm}:{a+4*tm+3}], v[{acc}:{acc+15}]")
        else:
            e(f"v_mfma_f32_32x32x16_bf16 v[136:151], v[{b}:{b+3}], v[{a}:{a+3}], v[136:151]")
            e(f"v_mfma_f32_32x32x16_bf16 v[152:167], v[{a}:{a+3}], v[{b+4}:{b+7}], v[152:167]")

def gemm_body(kv, tag):
    e("v_lshrrev_b32 v7, 5, v0")
    e("v_and_b32 v8, 31, v0")
    e("v_add_u32 v9, s41, v7")
    e("s_mov_b32 s40, 896")
    e("v_mul_lo_u32 v1, v9, s40")
    e("v_lshl_add_u32 v1, v8, 4, v1")
    e(f"s_mov_b32 s40, {XS}")
    e("v_mul_lo_u32 v2, v7, s40")
    e("v_lshl_add_u32 v2, v8, 4, v2")
    e("v_cmp_gt_u32 s[42:43], 28, v8")
    e("v_lshrrev_b32 v7, 4, v0")
    e("v_and_b32 v8, 15, v0")
    e(f"s_mov_b32 s40, {WS}")
    e("v_mul_lo_u32 v4, v7, s40")
    if not kv:
        e("v_mul_lo_u32 v3, v7, s36")
        e("v_lshl_add_u32 v3, v8, 4, v3")
        e("s_lshl_b32 s40, s38, 1")
        e("v_add_u32 v3, s40, v3")
        e("v_lshl_add_u32 v4, v8, 4, v4")
    else:
        e("v_mul_u32_u24 v3, 56, v7")
        e("v_lshl_add_u32 v3, v8, 2, v3")
        e("v_lshl_add_u32 v4, v8, 2, v4")
        e("v_cmp_gt_u32 s[48:49], 14, v8")
    e(f"v_add_u32 v4, {WBASE}, v4")
    gemm_load_stage(0, kv)
    e("v_lshrrev_b32 v7, 6, v0")
    e("v_and_b32 v8, 63, v0")
    e("v_and_b32 v9, 31, v8")
    e("v_lshrrev_b32 v10, 5, v8")
    if not kv:
        e("v_lshrrev_b32 v11, 1, v7")
        e("v_and_b32 v12, 1, v7")
        e("v_lshl_add_u32 v13, v11, 6, v9")
    else:
        e("v_lshl_add_u32 v13, v7, 5, v9")
        e("v_mov_b32 v12, 0")
    e(f"s_mov_b32 s40, {XS}")
    e("v_mul_lo_u32 v5, v13, s40")
    e("v_lshl_add_u32 v5, v10, 4, v5")
    e("v_bfe_u32 v14, v8, 2, 2")
    e("v_lshl_add_u32 v14, v10, 3, v14")
    e(f"s_mov_b32 s40, {WS}")
    e("v_mul_lo_u32 v6, v14, s40")
    e("v_bfe_u32 v14, v8, 4, 1")
    e("v_lshlrev_b32 v14, 5, v14")
    e("v_lshl_add_u32 v14, v12, 7, v14")
    e("v_and_b32 v15, 3, v8")
    e("v_lshl_add_u32 v14, v15, 3, v14")
    e("v_add_u32 v6, v6, v14")
    e(f"v_add_u32 v6, {WBASE}, v6")
    for r in range(136, 200):
        e(f"v_mov_b32 v{r}, 0")
    gemm_store_stage(kv)
    gemm_load_stage(1, kv)
    gemm_compute(kv)
    e("s_barrier")
    gemm_store_stage(kv)
    gemm_compute(kv)
    e("s_nop 15")
    e("s_nop 3")
    if not kv:
        e("v_add_u32 v16, s41, v13")
        e("v_mul_lo_u32 v16, v16, s37")
        e("v_lshlrev_b32 v17, 6, v12")
        e("v_lshl_add_u32 v17, v10, 2, v17")
        e("v_add_u32 v17, s38, v17")
        e("v_lshl_add_u32 v16, v17, 1, v16")
        e("s_lshl_b32 s40, s37, 5")
        for tm in range(2):
            for tn in range(2):
                acc = 136 + 16*(2*tm+tn)
                for q in range(4):
                    e(f"v_cvt_pk_bf16_f32 v20, v{acc+4*q}, v{acc+4*q+1}")
                    e(f"v_cvt_pk_bf16_f32 v21, v{acc+4*q+2}, v{acc+4*q+3}")
                    e(f"v_add_u32 v18, {32*tn+8*q}, v17")
                    e("v_cmp_gt_u32 vcc, s39, v18")
                    e("v_mov_b32 v19, 0x40000000")
                    e("s_nop 1")
                    e("v_cndmask_b32 v19, v19, v16, vcc")
                    so = "s40" if tm else "0"
                    e(f"buffer_store_dwordx2 v[20:21], v19, s[32:35], {so} offen offset:{(32*tn+8*q)*2}")
                    e("s_nop 1")
    else:
        e("v_add_u32 v16, s41, v13")
        e("v_lshlrev_b32 v16, 4, v16")
        e("v_lshl_add_u32 v16, v10, 3, v16")
        for q in range(4):
            e(f"v_cvt_pk_bf16_f32 v20, v{136+4*q}, v{136+4*q+1}")
            e(f"v_cvt_pk_bf16_f32 v21, v{136+4*q+2}, v{136+4*q+3}")
            e(f"s_mov_b32 s40, {q*32768}")
            e(f"buffer_store_dwordx2 v[20:21], v16, s[32:35], s40 offen")
            e("s_nop 1")
        e("v_lshlrev_b32 v16, 5, v7")
        e("v_add_u32 v16, s41, v16")
        e("v_lshlrev_b32 v16, 6, v16")
        e("v_lshl_add_u32 v16, v10, 9, v16")
        e("v_lshl_add_u32 v16, v9, 4, v16")
        e("v_cmp_eq_u32 vcc, 28, v9")
        e("v_cmp_lt_u32 s[48:49], 28, v9")
        e("s_mov_b32 s40, 0x3f803f80")
        e("v_mov_b32 v22, s40")
        e("s_nop 1")
        for q in range(4):
            e(f"v_cvt_pk_bf16_f32 v20, v{152+4*q}, v{152+4*q+1}")
            e(f"v_cvt_pk_bf16_f32 v21, v{152+4*q+2}, v{152+4*q+3}")
            e("v_cndmask_b32 v20, v20, v22, vcc")
            e("v_cndmask_b32 v21, v21, v22, vcc")
            e("v_cndmask_b32 v20, v20, 0, s[48:49]")
            e("v_cndmask_b32 v21, v21, 0, s[48:49]")
            e(f"s_mov_b32 s40, {OFF_VT-OFF_K4 + (q>>1)*1024 + (q&1)*8}")
            e(f"buffer_store_dwordx2 v[20:21], v16, s[32:35], s40 offen")
            e("s_nop 1")
    e("s_endpgm")

def k1():
    n = "k1_proj_kernel"
    khead(n)
    e("s_cmp_ge_u32 s2, 256")
    e("s_cbranch_scc1 k1_exit")
    e("s_load_dwordx16 s[4:19], s[0:1], 0")
    e("s_load_dwordx2 s[20:21], s[0:1], 80")
    e("s_and_b32 s22, s2, 15")
    e("s_lshr_b32 s23, s2, 4")
    e("s_lshl_b32 s41, s23, 7")
    e("s_waitcnt lgkmcnt(0)")
    e("s_cmp_eq_u32 s22, 4")
    e("s_cbranch_scc1 k1_kv")
    e("s_cmp_gt_u32 s22, 4")
    e("s_cbranch_scc1 k1_b")
    srd(24, 4, 5, 0, 1835008)
    srd(28, 6, 7, 0, 448*448*2)
    srd(32, 20, 21, OFF_Q, 1835008)
    e("s_mov_b32 s36, 896"); e("s_mov_b32 s37, 896"); e("s_lshl_b32 s38, s22, 7"); e("s_mov_b32 s39, 448")
    e("s_branch k1_main")
    lab("k1_b")
    srd(24, 14, 15, 0, 1835008)
    srd(28, 16, 17, 0, 448*1344*2)
    srd(32, 20, 21, OFF_QKVB, 2048*1344*2)
    e("s_mov_b32 s36, 2688"); e("s_mov_b32 s37, 2688"); e("s_sub_u32 s38, s22, 5"); e("s_lshl_b32 s38, s38, 7"); e("s_mov_b32 s39, 1344")
    lab("k1_main")
    gemm_body(False, "k1")
    lab("k1_kv")
    srd(24, 4, 5, 0, 1835008)
    srd(28, 8, 9, 0, 448*56)
    srd(44, 10, 11, 0, 448*56)
    srd(32, 20, 21, OFF_K4, 0x40000)
    gemm_body(True, "k1kv")
    lab("k1_exit")
    e("s_endpgm")
    kd(n)

def k3():
    n = "k3_out_kernel"
    khead(n)
    e("s_cmp_ge_u32 s2, 128")
    e("s_cbranch_scc1 k3_exit")
    e("s_load_dwordx2 s[4:5], s[0:1], 32")
    e("s_load_dwordx2 s[6:7], s[0:1], 56")
    e("s_load_dwordx2 s[8:9], s[0:1], 64")
    e("s_load_dwordx2 s[20:21], s[0:1], 80")
    e("s_and_b32 s22, s2, 3")
    e("s_lshr_b32 s23, s2, 3")
    e("s_lshl_b32 s41, s23, 7")
    e("s_lshl_b32 s38, s22, 7")
    e("s_mov_b32 s36, 896"); e("s_mov_b32 s37, 1792"); e("s_mov_b32 s39, 448")
    e("s_waitcnt lgkmcnt(0)")
    e("s_bitcmp1_b32 s2, 2")
    e("s_cbranch_scc1 k3_b")
    srd(24, 20, 21, OFF_OA, 1835008)
    srd(28, 4, 5, 0, 448*448*2)
    srd(32, 8, 9, 0, 2048*896*2)
    e("s_branch k3_main")
    lab("k3_b")
    srd(24, 20, 21, OFF_OB, 1835008)
    srd(28, 6, 7, 0, 448*448*2)
    srd(32, 8, 9, 896, 2048*896*2 - 896)
    lab("k3_main")
    gemm_body(False, "k3")
    lab("k3_exit")
    e("s_endpgm")
    kd(n)

import struct
def f32hex(x): return "0x%08x" % struct.unpack("<I", struct.pack("<f", x))[0]
SCALE = 28 ** -0.5
CL = SCALE * 1.4426950408889634

def k2():
    n = "k2_attn_kernel"
    khead(n)
    e("s_cmp_ge_u32 s2, 320")
    e("s_cbranch_scc1 k2_exit")
    e("s_load_dwordx2 s[20:21], s[0:1], 80")
    e("s_waitcnt lgkmcnt(0)")
    e("s_cmp_ge_u32 s2, 256")
    e("s_cbranch_scc1 k2_b")
    srd(24, 20, 21, OFF_Q, 1835008)
    srd(28, 20, 21, OFF_K4, 0x40000)
    srd(32, 20, 21, OFF_OA, 1835008)
    e("v_and_b32 v1, 63, v0")
    e("v_lshrrev_b32 v2, 6, v0")
    e("v_and_b32 v3, 31, v1")
    e("v_lshrrev_b32 v4, 5, v1")
    e("v_and_b32 v5, 3, v2")
    e("v_lshrrev_b32 v6, 2, v2")
    e("s_nop 0")
    e("v_readfirstlane_b32 s36, v6")
    e("v_bfe_u32 v7, v0, 7, 2")
    e("v_and_b32 v9, 127, v0")
    e("v_lshlrev_b32 v88, 15, v7")
    e("v_lshl_add_u32 v88, v9, 4, v88")
    e("v_lshlrev_b32 v89, 11, v7")
    e("v_lshl_add_u32 v89, v9, 4, v89")
    e("v_lshlrev_b32 v90, 4, v0")
    def loadstage(st):
        e(f"s_mov_b32 s40, {st*2048}")
        e("buffer_load_dwordx4 v[72:75], v88, s[28:31], s40 offen")
        e(f"s_mov_b32 s40, {st*2048 + 16384}")
        e("buffer_load_dwordx4 v[76:79], v88, s[28:31], s40 offen")
        e(f"s_mov_b32 s40, {0x20000 + st*8192}")
        e("buffer_load_dwordx4 v[80:83], v90, s[28:31], s40 offen")
        e(f"s_mov_b32 s40, {0x20000 + st*8192 + 65536}")
        e("buffer_load_dwordx4 v[84:87], v90, s[28:31], s40 offen")
    def storestage(b):
        e("s_waitcnt vmcnt(0)")
        e(f"ds_write_b128 v89, v[72:75] offset:{b*32768}")
        e(f"ds_write_b128 v89, v[76:79] offset:{b*32768+16384}")
        e(f"ds_write_b128 v90, v[80:83] offset:{b*32768+8192}")
        e(f"ds_write_b128 v90, v[84:87] offset:{b*32768+16384+8192}")
        e("s_waitcnt lgkmcnt(0)")
        e("s_barrier")
    loadstage(0)
    e("s_lshl_b32 s41, s2, 3")
    e("v_lshrrev_b32 v7, 4, v3")
    e("v_lshl_add_u32 v7, v5, 1, v7")
    e("v_add_u32 v7, s41, v7")
    e("s_mov_b32 s40, 896")
    e("v_mul_lo_u32 v7, v7, s40")
    e("v_and_b32 v9, 15, v3")
    e("v_mul_u32_u24 v9, 56, v9")
    e("v_add_u32 v7, v7, v9")
    e("v_lshl_add_u32 v98, v4, 4, v7")
    e("buffer_load_dwordx4 v[8:11], v98, s[24:27], 0 offen")
    e("buffer_load_dwordx4 v[12:15], v98, s[24:27], 0 offen offset:32")
    e("v_cmp_gt_u32 vcc, 32, v1")
    e("s_waitcnt vmcnt(0)")
    e("s_nop 1")
    e("v_cndmask_b32 v14, 0, v14, vcc")
    e("v_cndmask_b32 v15, 0, v15, vcc")
    for r in range(32, 48): e(f"v_mov_b32 v{r}, 0")
    e("v_mov_b32 v91, 0xff800000")
    e("v_lshlrev_b32 v92, 14, v6")
    e("v_lshl_add_u32 v93, v4, 11, v92")
    e("v_lshl_add_u32 v93, v3, 4, v93")
    e("v_lshl_add_u32 v94, v4, 9, v92")
    e("v_lshl_add_u32 v94, v3, 4, v94")
    e(f"s_mov_b32 s42, {f32hex(CL)}")
    storestage(0)
    for st in range(8):
        b = st & 1
        if st < 7: loadstage(st+1)
        for t in range(4):
            ko = b*32768 + t*512
            vo = b*32768 + 8192 + t*2048
            e(f"ds_read_b128 v[48:51], v93 offset:{ko}")
            e(f"ds_read_b128 v[52:55], v93 offset:{ko+4096}")
            e(f"ds_read_b128 v[56:59], v94 offset:{vo}")
            e(f"ds_read_b128 v[60:63], v94 offset:{vo+1024}")
            e("s_waitcnt lgkmcnt(2)")
            e("v_mfma_f32_32x32x16_bf16 v[16:31], v[48:51], v[8:11], 0")
            e("v_mfma_f32_32x32x16_bf16 v[16:31], v[52:55], v[12:15], v[16:31]")
            e("s_nop 15")
            e("v_max3_f32 v95, v16, v17, v18")
            for r in range(19, 31, 2):
                e(f"v_max3_f32 v95, v95, v{r}, v{r+1}")
            e("v_max_f32 v95, v95, v31")
            e("v_mov_b32 v96, v95")
            e("s_nop 1")
            e("v_permlane32_swap_b32 v95, v96")
            e("v_max3_f32 v96, v95, v96, v91")
            e("v_sub_f32 v97, v91, v96")
            e("v_mul_f32 v97, s42, v97")
            e("v_exp_f32 v97, v97")
            e("v_mov_b32 v91, v96")
            e("v_mul_f32 v96, s42, v96")
            for r in range(16, 32):
                e(f"v_fma_f32 v{r}, v{r}, s42, -v96")
            for r in range(16, 32):
                e(f"v_exp_f32 v{r}, v{r}")
            for r in range(32, 48):
                e(f"v_mul_f32 v{r}, v97, v{r}")
            for i in range(8):
                e(f"v_cvt_pk_bf16_f32 v{64+i}, v{16+2*i}, v{17+2*i}")
            e("s_waitcnt lgkmcnt(0)")
            e("s_nop 1")
            e("v_mfma_f32_32x32x16_bf16 v[32:47], v[56:59], v[64:67], v[32:47]")
            e("v_mfma_f32_32x32x16_bf16 v[32:47], v[60:63], v[68:71], v[32:47]")
            e("s_nop 7")
        if st < 7:
            storestage(b ^ 1)
    e("s_nop 15")
    e("s_barrier")
    e("v_mul_u32_u24 v92, 4352, v5")
    e("v_lshl_add_u32 v92, v1, 2, v92")
    e("s_cmp_eq_u32 s36, 0")
    e("s_cbranch_scc1 k2_low")
    for r in range(16):
        e(f"ds_write_b32 v92, v{32+r} offset:{r*256}")
    e("ds_write_b32 v92, v91 offset:4096")
    e("s_waitcnt lgkmcnt(0)")
    e("s_barrier")
    e("s_endpgm")
    lab("k2_low")
    e("s_barrier")
    for r in range(16):
        e(f"ds_read_b32 v{48+r}, v92 offset:{r*256}")
    e("ds_read_b32 v95, v92 offset:4096")
    e("s_waitcnt lgkmcnt(0)")
    e("v_max_f32 v96, v95, v91")
    e("v_sub_f32 v97, v91, v96")
    e("v_sub_f32 v95, v95, v96")
    e("v_mul_f32 v97, s42, v97")
    e("v_mul_f32 v95, s42, v95")
    e("v_exp_f32 v97, v97")
    e("v_exp_f32 v95, v95")
    e("s_nop 0")
    for r in range(16):
        e(f"v_mul_f32 v{32+r}, v97, v{32+r}")
        e(f"v_fma_f32 v{32+r}, v95, v{48+r}, v{32+r}")
    e("v_mov_b32 v95, v44")
    e("v_mov_b32 v96, v44")
    e("s_nop 1")
    e("v_permlane32_swap_b32 v95, v96")
    e("v_rcp_f32 v96, v96")
    e("s_nop 0")
    for r in range(16):
        e(f"v_mul_f32 v{32+r}, v96, v{32+r}")
    e("v_lshl_add_u32 v7, v4, 3, v7")
    for q in range(4):
        e(f"v_cvt_pk_bf16_f32 v{64+2*q}, v{32+4*q}, v{33+4*q}")
        e(f"v_cvt_pk_bf16_f32 v{65+2*q}, v{34+4*q}, v{35+4*q}")
    for q in range(3):
        e(f"buffer_store_dwordx2 v[{64+2*q}:{65+2*q}], v7, s[32:35], 0 offen offset:{16*q}")
    e("v_cmp_gt_u32 vcc, 32, v1")
    e("v_mov_b32 v9, 0x40000000")
    e("s_nop 1")
    e("v_cndmask_b32 v9, v9, v7, vcc")
    e("buffer_store_dwordx2 v[70:71], v9, s[32:35], 0 offen offset:48")
    e("s_endpgm")
    lab("k2_b")
    srd(24, 20, 21, OFF_QKVB, 2048*1344*2)
    srd(32, 20, 21, OFF_OB, 1835008)
    e("s_sub_u32 s40, s2, 256")
    e("s_lshl_b32 s40, s40, 9")
    e("v_add_u32 v1, s40, v0")
    e("v_lshrrev_b32 v2, 4, v1")
    e("v_and_b32 v3, 15, v1")
    e("v_mul_u32_u24 v3, 56, v3")
    e("s_mov_b32 s40, 2688")
    e("v_mul_lo_u32 v4, v2, s40")
    e("v_add_u32 v4, v4, v3")
    for i in range(7):
        e(f"buffer_load_dwordx2 v[{10+2*i}:{11+2*i}], v4, s[24:27], 0 offen offset:{8*i}")
    for w in range(8):
        e(f"v_subrev_u32 v5, {2*w}, v2")
        e("v_max_i32 v5, 0, v5")
        e("v_mul_lo_u32 v5, v5, s40")
        e(f"v_add_u32 v{100+w}, v5, v3")
        for i in range(7):
            e(f"buffer_load_dwordx2 v[{24+2*i}:{25+2*i}], v{100+w}, s[24:27], 0 offen offset:{896+8*i}")
        e("s_waitcnt vmcnt(0)")
        e(f"v_mov_b32 v{40+w}, 0")
        for i in range(14):
            e(f"v_dot2_f32_bf16 v{40+w}, v{10+i}, v{24+i}, v{40+w}")
        e("s_nop 2")
        e(f"v_cvt_pk_bf16_f32 v6, v{40+w}, v{40+w}")
        e("v_lshlrev_b32 v6, 16, v6")
        e(f"v_mul_f32 v6, {f32hex(SCALE)}, v6")
        e("v_cvt_pk_bf16_f32 v6, v6, v6")
        e("v_lshlrev_b32 v6, 16, v6")
        e(f"v_cmp_le_u32 vcc, {2*w}, v2")
        e("v_mov_b32 v7, 0xce6e6b28")
        e("s_nop 1")
        e(f"v_cndmask_b32 v{40+w}, v7, v6, vcc")
    e("v_max3_f32 v6, v40, v41, v42")
    e("v_max3_f32 v6, v6, v43, v44")
    e("v_max3_f32 v6, v6, v45, v46")
    e("v_max_f32 v6, v6, v47")
    e("v_mov_b32 v7, 0")
    for w in range(8):
        e(f"v_sub_f32 v{40+w}, v{40+w}, v6")
        e(f"v_mul_f32 v{40+w}, 0x3fb8aa3b, v{40+w}")
        e(f"v_exp_f32 v{40+w}, v{40+w}")
        e("s_nop 0")
        e(f"v_add_f32 v7, v7, v{40+w}")
    e("v_rcp_f32 v7, v7")
    e("s_nop 0")
    for w in range(8):
        e(f"v_mul_f32 v{40+w}, v7, v{40+w}")
        e(f"v_cvt_pk_bf16_f32 v{40+w}, v{40+w}, v{40+w}")
        e(f"v_lshlrev_b32 v{40+w}, 16, v{40+w}")
    for i in range(28): e(f"v_mov_b32 v{50+i}, 0")
    for w in range(8):
        for i in range(7):
            e(f"buffer_load_dwordx2 v[{24+2*i}:{25+2*i}], v{100+w}, s[24:27], 0 offen offset:{1792+8*i}")
        e("s_waitcnt vmcnt(0)")
        for i in range(14):
            e(f"v_lshlrev_b32 v6, 16, v{24+i}")
            e(f"v_and_b32 v7, 0xffff0000, v{24+i}")
            e(f"v_fmac_f32 v{50+2*i}, v{40+w}, v6")
            e(f"v_fmac_f32 v{51+2*i}, v{40+w}, v7")
    e("s_mov_b32 s40, 896")
    e("v_mul_lo_u32 v4, v2, s40")
    e("v_add_u32 v4, v4, v3")
    for i in range(14):
        e(f"v_cvt_pk_bf16_f32 v{10+i}, v{50+2*i}, v{51+2*i}")
    for i in range(7):
        e(f"buffer_store_dwordx2 v[{10+2*i}:{11+2*i}], v4, s[32:35], 0 offen offset:{8*i}")
    lab("k2_exit")
    e("s_endpgm")
    kd(n, 128)

hdr = open(f"cdna_kernels/{NAME}.s.ref").read().split("; Override")[0]
out = hdr
out += f"; @launch kernel=k1_proj_kernel grid=(256,1,1) block=(256,1,1) lds={GEMM_LDS}\n"
out += f"; @launch kernel=k2_attn_kernel grid=(320,1,1) block=(512,1,1) lds=65536\n"
out += f"; @launch kernel=k3_out_kernel grid=(128,1,1) block=(256,1,1) lds={GEMM_LDS}\n"
out += '.amdgcn_target "amdgcn-amd-amdhsa--gfx950"\n.text\n'
k1(); k2(); k3()
out += "\n".join(L) + "\n"
open(f"cdna_kernels/{NAME}.s", "w").write(out)
```

```python
NAME = "concat_heads__grouped_kv_mqa__sliding_local_dilated__prompt"
OFF_Q = 0x0
OFF_K4 = 0x200000
OFF_VT = 0x220000
OFF_QKVB = 0x300000
OFF_OA = 0x900000
OFF_OB = 0xB00000
XS = 464
WS = 272
WBASE = 128 * XS
GEMM_LDS = WBASE + 224 * WS

L = []
def e(s): L.append("    " + s)
def lab(s): L.append(s + ":")

def srd(dst, lo, hi, off, size):
    e(f"s_add_u32 s{dst}, s{lo}, {off:#x}")
    e(f"s_addc_u32 s{dst+1}, s{hi}, 0")
    e(f"s_and_b32 s{dst+1}, s{dst+1}, 0xffff")
    e(f"s_mov_b32 s{dst+2}, {size:#x}")
    e(f"s_mov_b32 s{dst+3}, 0x00020000")

def kd(name, vgpr=256):
    L.append(f""".section .rodata,"a"
.p2align 6
.amdhsa_kernel {name}
  .amdhsa_next_free_vgpr {vgpr}
  .amdhsa_next_free_sgpr 96
  .amdhsa_accum_offset {vgpr}
  .amdhsa_group_segment_fixed_size 0
  .amdhsa_kernarg_size 88
  .amdhsa_user_sgpr_count 2
  .amdhsa_user_sgpr_kernarg_segment_ptr 1
  .amdhsa_system_sgpr_workgroup_id_x 1
.end_amdhsa_kernel
.text""")

def khead(name):
    L.append(f".globl {name}\n.p2align 8\n.type {name},@function\n{name}:")

def gemm_load_stage(stage, kv):
    for i in range(16):
        e(f"s_mov_b32 s40, {i*8*896 + stage*448}")
        e(f"buffer_load_dwordx4 v[{16+4*i}:{19+4*i}], v1, s[24:27], s40 offen")
    if not kv:
        for i in range(14):
            e(f"s_mul_i32 s40, s36, {i*16 + stage*224}")
            e(f"buffer_load_dwordx4 v[{80+4*i}:{83+4*i}], v3, s[28:31], s40 offen")
    else:
        for i in range(14):
            e(f"s_mov_b32 s40, {(i*16 + stage*224)*56}")
            e(f"buffer_load_dword v{80+2*i}, v3, s[28:31], s40 offen")
            e(f"buffer_load_dword v{81+2*i}, v3, s[44:47], s40 offen")

def gemm_store_stage(kv):
    e("s_waitcnt vmcnt(0)")
    e("s_mov_b64 exec, s[42:43]")
    for i in range(16):
        e(f"ds_write_b128 v2, v[{16+4*i}:{19+4*i}] offset:{i*8*XS}")
    e("s_mov_b64 exec, -1")
    if not kv:
        for i in range(14):
            e(f"ds_write_b128 v4, v[{80+4*i}:{83+4*i}] offset:{i*16*WS}")
    else:
        for i in range(14):
            e(f"v_cndmask_b32 v{80+2*i}, 0, v{80+2*i}, s[48:49]")
            e(f"v_cndmask_b32 v{81+2*i}, 0, v{81+2*i}, s[48:49]")
            e(f"ds_write_b32 v4, v{80+2*i} offset:{i*16*WS}")
            e(f"ds_write_b32 v4, v{81+2*i} offset:{i*16*WS+64}")
    e("s_waitcnt lgkmcnt(0)")
    e("s_barrier")

def gemm_compute(kv):
    def reads(kk, s):
        a = 200 + 16*s; b = a + 8
        e(f"ds_read_b128 v[{a}:{a+3}], v5 offset:{kk*32}")
        if not kv:
            e(f"ds_read_b128 v[{a+4}:{a+7}], v5 offset:{kk*32 + 32*XS}")
        e(f"ds_read_b64_tr_b16 v[{b}:{b+1}], v6 offset:{kk*16*WS}")
        e(f"ds_read_b64_tr_b16 v[{b+2}:{b+3}], v6 offset:{kk*16*WS + 4*WS}")
        e(f"ds_read_b64_tr_b16 v[{b+4}:{b+5}], v6 offset:{kk*16*WS + 64}")
        e(f"ds_read_b64_tr_b16 v[{b+6}:{b+7}], v6 offset:{kk*16*WS + 4*WS + 64}")
    nr = 5 if kv else 6
    reads(0, 0)
    for kk in range(14):
        s = kk & 1
        if kk < 13:
            reads(kk+1, s ^ 1)
            e(f"s_waitcnt lgkmcnt({nr})")
        else:
            e("s_waitcnt lgkmcnt(0)")
        a = 200 + 16*s; b = a + 8
        if not kv:
            for tm in range(2):
                for tn in range(2):
                    acc = 136 + 16*(2*tm+tn)
                    e(f"v_mfma_f32_32x32x16_bf16 v[{acc}:{acc+15}], v[{b+4*tn}:{b+4*tn+3}], v[{a+4*tm}:{a+4*tm+3}], v[{acc}:{acc+15}]")
        else:
            e(f"v_mfma_f32_32x32x16_bf16 v[136:151], v[{b}:{b+3}], v[{a}:{a+3}], v[136:151]")
            e(f"v_mfma_f32_32x32x16_bf16 v[152:167], v[{a}:{a+3}], v[{b+4}:{b+7}], v[152:167]")

def gemm_body(kv, tag):
    e("v_lshrrev_b32 v7, 5, v0")
    e("v_and_b32 v8, 31, v0")
    e("v_add_u32 v9, s41, v7")
    e("s_mov_b32 s40, 896")
    e("v_mul_lo_u32 v1, v9, s40")
    e("v_lshl_add_u32 v1, v8, 4, v1")
    e(f"s_mov_b32 s40, {XS}")
    e("v_mul_lo_u32 v2, v7, s40")
    e("v_lshl_add_u32 v2, v8, 4, v2")
    e("v_cmp_gt_u32 s[42:43], 28, v8")
    e("v_lshrrev_b32 v7, 4, v0")
    e("v_and_b32 v8, 15, v0")
    e(f"s_mov_b32 s40, {WS}")
    e("v_mul_lo_u32 v4, v7, s40")
    if not kv:
        e("v_mul_lo_u32 v3, v7, s36")
        e("v_lshl_add_u32 v3, v8, 4, v3")
        e("s_lshl_b32 s40, s38, 1")
        e("v_add_u32 v3, s40, v3")
        e("v_lshl_add_u32 v4, v8, 4, v4")
    else:
        e("v_mul_u32_u24 v3, 56, v7")
        e("v_lshl_add_u32 v3, v8, 2, v3")
        e("v_lshl_add_u32 v4, v8, 2, v4")
        e("v_cmp_gt_u32 s[48:49], 14, v8")
    e(f"v_add_u32 v4, {WBASE}, v4")
    gemm_load_stage(0, kv)
    e("v_lshrrev_b32 v7, 6, v0")
    e("v_and_b32 v8, 63, v0")
    e("v_and_b32 v9, 31, v8")
    e("v_lshrrev_b32 v10, 5, v8")
    if not kv:
        e("v_lshrrev_b32 v11, 1, v7")
        e("v_and_b32 v12, 1, v7")
        e("v_lshl_add_u32 v13, v11, 6, v9")
    else:
        e("v_lshl_add_u32 v13, v7, 5, v9")
        e("v_mov_b32 v12, 0")
    e(f"s_mov_b32 s40, {XS}")
    e("v_mul_lo_u32 v5, v13, s40")
    e("v_lshl_add_u32 v5, v10, 4, v5")
    e("v_bfe_u32 v14, v8, 2, 2")
    e("v_lshl_add_u32 v14, v10, 3, v14")
    e(f"s_mov_b32 s40, {WS}")
    e("v_mul_lo_u32 v6, v14, s40")
    e("v_bfe_u32 v14, v8, 4, 1")
    e("v_lshlrev_b32 v14, 5, v14")
    e("v_lshl_add_u32 v14, v12, 7, v14")
    e("v_and_b32 v15, 3, v8")
    e("v_lshl_add_u32 v14, v15, 3, v14")
    e("v_add_u32 v6, v6, v14")
    e(f"v_add_u32 v6, {WBASE}, v6")
    for r in range(136, 200):
        e(f"v_mov_b32 v{r}, 0")
    gemm_store_stage(kv)
    gemm_load_stage(1, kv)
    gemm_compute(kv)
    e("s_barrier")
    gemm_store_stage(kv)
    gemm_compute(kv)
    e("s_nop 15")
    e("s_nop 3")
    if not kv:
        e("v_add_u32 v16, s41, v13")
        e("v_mul_lo_u32 v16, v16, s37")
        e("v_lshlrev_b32 v17, 6, v12")
        e("v_lshl_add_u32 v17, v10, 2, v17")
        e("v_add_u32 v17, s38, v17")
        e("v_lshl_add_u32 v16, v17, 1, v16")
        e("s_lshl_b32 s40, s37, 5")
        for tm in range(2):
            for tn in range(2):
                acc = 136 + 16*(2*tm+tn)
                for q in range(4):
                    e(f"v_cvt_pk_bf16_f32 v20, v{acc+4*q}, v{acc+4*q+1}")
                    e(f"v_cvt_pk_bf16_f32 v21, v{acc+4*q+2}, v{acc+4*q+3}")
                    e(f"v_add_u32 v18, {32*tn+8*q}, v17")
                    e("v_cmp_gt_u32 vcc, s39, v18")
                    e("v_mov_b32 v19, 0x40000000")
                    e("s_nop 1")
                    e("v_cndmask_b32 v19, v19, v16, vcc")
                    so = "s40" if tm else "0"
                    e(f"buffer_store_dwordx2 v[20:21], v19, s[32:35], {so} offen offset:{(32*tn+8*q)*2}")
                    e("s_nop 1")
    else:
        e("v_add_u32 v16, s41, v13")
        e("v_lshlrev_b32 v16, 4, v16")
        e("v_lshl_add_u32 v16, v10, 3, v16")
        for q in range(4):
            e(f"v_cvt_pk_bf16_f32 v20, v{136+4*q}, v{136+4*q+1}")
            e(f"v_cvt_pk_bf16_f32 v21, v{136+4*q+2}, v{136+4*q+3}")
            e(f"s_mov_b32 s40, {q*32768}")
            e(f"buffer_store_dwordx2 v[20:21], v16, s[32:35], s40 offen")
            e("s_nop 1")
        e("v_lshlrev_b32 v16, 5, v7")
        e("v_add_u32 v16, s41, v16")
        e("v_lshlrev_b32 v16, 6, v16")
        e("v_lshl_add_u32 v16, v10, 9, v16")
        e("v_lshl_add_u32 v16, v9, 4, v16")
        e("v_cmp_eq_u32 vcc, 28, v9")
        e("v_cmp_lt_u32 s[48:49], 28, v9")
        e("s_mov_b32 s40, 0x3f803f80")
        e("v_mov_b32 v22, s40")
        e("s_nop 1")
        for q in range(4):
            e(f"v_cvt_pk_bf16_f32 v20, v{152+4*q}, v{152+4*q+1}")
            e(f"v_cvt_pk_bf16_f32 v21, v{152+4*q+2}, v{152+4*q+3}")
            e("v_cndmask_b32 v20, v20, v22, vcc")
            e("v_cndmask_b32 v21, v21, v22, vcc")
            e("v_cndmask_b32 v20, v20, 0, s[48:49]")
            e("v_cndmask_b32 v21, v21, 0, s[48:49]")
            e(f"s_mov_b32 s40, {OFF_VT-OFF_K4 + (q>>1)*1024 + (q&1)*8}")
            e(f"buffer_store_dwordx2 v[20:21], v16, s[32:35], s40 offen")
            e("s_nop 1")
    e("s_endpgm")

def k1():
    n = "k1_proj_kernel"
    khead(n)
    e("s_cmp_ge_u32 s2, 256")
    e("s_cbranch_scc1 k1_exit")
    e("s_load_dwordx16 s[4:19], s[0:1], 0")
    e("s_load_dwordx2 s[20:21], s[0:1], 80")
    e("s_and_b32 s22, s2, 15")
    e("s_lshr_b32 s23, s2, 4")
    e("s_lshl_b32 s41, s23, 7")
    e("s_waitcnt lgkmcnt(0)")
    e("s_cmp_eq_u32 s22, 4")
    e("s_cbranch_scc1 k1_kv")
    e("s_cmp_gt_u32 s22, 4")
    e("s_cbranch_scc1 k1_b")
    srd(24, 4, 5, 0, 1835008)
    srd(28, 6, 7, 0, 448*448*2)
    srd(32, 20, 21, OFF_Q, 1835008)
    e("s_mov_b32 s36, 896"); e("s_mov_b32 s37, 896"); e("s_lshl_b32 s38, s22, 7"); e("s_mov_b32 s39, 448")
    e("s_branch k1_main")
    lab("k1_b")
    srd(24, 14, 15, 0, 1835008)
    srd(28, 16, 17, 0, 448*1344*2)
    srd(32, 20, 21, OFF_QKVB, 2048*1344*2)
    e("s_mov_b32 s36, 2688"); e("s_mov_b32 s37, 2688"); e("s_sub_u32 s38, s22, 5"); e("s_lshl_b32 s38, s38, 7"); e("s_mov_b32 s39, 1344")
    lab("k1_main")
    gemm_body(False, "k1")
    lab("k1_kv")
    srd(24, 4, 5, 0, 1835008)
    srd(28, 8, 9, 0, 448*56)
    srd(44, 10, 11, 0, 448*56)
    srd(32, 20, 21, OFF_K4, 0x40000)
    gemm_body(True, "k1kv")
    lab("k1_exit")
    e("s_endpgm")
    kd(n)

def k3():
    n = "k3_out_kernel"
    khead(n)
    e("s_cmp_ge_u32 s2, 128")
    e("s_cbranch_scc1 k3_exit")
    e("s_load_dwordx2 s[4:5], s[0:1], 32")
    e("s_load_dwordx2 s[6:7], s[0:1], 56")
    e("s_load_dwordx2 s[8:9], s[0:1], 64")
    e("s_load_dwordx2 s[20:21], s[0:1], 80")
    e("s_and_b32 s22, s2, 3")
    e("s_lshr_b32 s23, s2, 3")
    e("s_lshl_b32 s41, s23, 7")
    e("s_lshl_b32 s38, s22, 7")
    e("s_mov_b32 s36, 896"); e("s_mov_b32 s37, 1792"); e("s_mov_b32 s39, 448")
    e("s_waitcnt lgkmcnt(0)")
    e("s_bitcmp1_b32 s2, 2")
    e("s_cbranch_scc1 k3_b")
    srd(24, 20, 21, OFF_OA, 1835008)
    srd(28, 4, 5, 0, 448*448*2)
    srd(32, 8, 9, 0, 2048*896*2)
    e("s_branch k3_main")
    lab("k3_b")
    srd(24, 20, 21, OFF_OB, 1835008)
    srd(28, 6, 7, 0, 448*448*2)
    srd(32, 8, 9, 896, 2048*896*2 - 896)
    lab("k3_main")
    gemm_body(False, "k3")
    lab("k3_exit")
    e("s_endpgm")
    kd(n)

import struct
def f32hex(x): return "0x%08x" % struct.unpack("<I", struct.pack("<f", x))[0]
SCALE = 28 ** -0.5
CL = SCALE * 1.4426950408889634

def k2():
    n = "k2_attn_kernel"
    khead(n)
    e("s_cmp_ge_u32 s2, 320")
    e("s_cbranch_scc1 k2_exit")
    e("s_load_dwordx2 s[20:21], s[0:1], 80")
    e("s_waitcnt lgkmcnt(0)")
    e("s_cmp_ge_u32 s2, 256")
    e("s_cbranch_scc1 k2_b")
    srd(24, 20, 21, OFF_Q, 1835008)
    srd(28, 20, 21, OFF_K4, 0x40000)
    srd(32, 20, 21, OFF_OA, 1835008)
    e("v_and_b32 v1, 63, v0")
    e("v_lshrrev_b32 v2, 6, v0")
    e("v_and_b32 v3, 31, v1")
    e("v_lshrrev_b32 v4, 5, v1")
    e("v_and_b32 v5, 3, v2")
    e("v_lshrrev_b32 v6, 2, v2")
    e("s_nop 0")
    e("v_readfirstlane_b32 s36, v6")
    e("v_lshrrev_b32 v7, 8, v0")
    e("v_and_b32 v9, 255, v0")
    e("v_lshlrev_b32 v88, 15, v7")
    e("v_lshl_add_u32 v88, v9, 4, v88")
    e("v_lshlrev_b32 v89, 12, v7")
    e("v_lshl_add_u32 v89, v9, 4, v89")
    e("v_lshlrev_b32 v90, 4, v0")
    def loadstage(st):
        for i in range(4):
            e(f"s_mov_b32 s40, {st*4096 + (i>>1)*16384 + (i&1)*65536}")
            e(f"buffer_load_dwordx4 v[{100+4*i}:{103+4*i}], v88, s[28:31], s40 offen")
        for i in range(4):
            e(f"s_mov_b32 s40, {0x20000 + st*16384 + (i>>1)*65536 + (i&1)*8192}")
            e(f"buffer_load_dwordx4 v[{116+4*i}:{119+4*i}], v90, s[28:31], s40 offen")
    def storestage(b):
        e("s_waitcnt vmcnt(0)")
        for i in range(4):
            e(f"ds_write_b128 v89, v[{100+4*i}:{103+4*i}] offset:{(i>>1)*32768 + (i&1)*8192}" if b == 0 else
              f"ds_write_b128 v132, v[{100+4*i}:{103+4*i}] offset:{(i>>1)*32768 + (i&1)*8192}")
        for i in range(4):
            e(f"ds_write_b128 v{90 if b==0 else 133}, v[{116+4*i}:{119+4*i}] offset:{(i>>1)*32768 + 16384 + (i&1)*8192}")
        e("s_waitcnt lgkmcnt(0)")
        e("s_barrier")
    e("v_add_u32 v132, 65536, v89")
    e("v_add_u32 v133, 65536, v90")
    loadstage(0)
    e("s_lshl_b32 s41, s2, 3")
    e("v_lshrrev_b32 v7, 4, v3")
    e("v_lshl_add_u32 v7, v5, 1, v7")
    e("v_add_u32 v7, s41, v7")
    e("s_mov_b32 s40, 896")
    e("v_mul_lo_u32 v7, v7, s40")
    e("v_and_b32 v9, 15, v3")
    e("v_mul_u32_u24 v9, 56, v9")
    e("v_add_u32 v7, v7, v9")
    e("v_lshl_add_u32 v98, v4, 4, v7")
    e("buffer_load_dwordx4 v[8:11], v98, s[24:27], 0 offen")
    e("buffer_load_dwordx4 v[12:15], v98, s[24:27], 0 offen offset:32")
    e("v_cmp_gt_u32 vcc, 32, v1")
    e("s_waitcnt vmcnt(0)")
    e("s_nop 1")
    e("v_cndmask_b32 v14, 0, v14, vcc")
    e("v_cndmask_b32 v15, 0, v15, vcc")
    for r in range(32, 48): e(f"v_mov_b32 v{r}, 0")
    e("v_mov_b32 v91, 0xff800000")
    e("v_lshlrev_b32 v92, 15, v6")
    e("v_lshl_add_u32 v93, v4, 12, v92")
    e("v_lshl_add_u32 v93, v3, 4, v93")
    e("v_lshl_add_u32 v94, v4, 9, v92")
    e("v_lshl_add_u32 v94, v3, 4, v94")
    e("v_add_u32 v94, 16384, v94")
    e("v_add_u32 v98, 65536, v93")
    e("v_add_u32 v99, 65536, v94")
    e(f"s_mov_b32 s42, {f32hex(CL)}")
    storestage(0)
    SB = [16, 72]
    KB = [48, 48]
    for st in range(4):
        b = st & 1
        ka = "v93" if b == 0 else "v98"
        va = "v94" if b == 0 else "v99"
        if st < 3: loadstage(st+1)
        def rdK(t):
            e(f"ds_read_b128 v[48:51], {ka} offset:{t*512}")
            e(f"ds_read_b128 v[52:55], {ka} offset:{t*512+8192}")
        def qk(sb):
            e(f"v_mfma_f32_32x32x16_bf16 v[{sb}:{sb+15}], v[48:51], v[8:11], 0")
            e(f"v_mfma_f32_32x32x16_bf16 v[{sb}:{sb+15}], v[52:55], v[12:15], v[{sb}:{sb+15}]")
        rdK(0)
        e("s_waitcnt lgkmcnt(0)")
        qk(SB[0])
        for t in range(8):
            cur = SB[t & 1]; nxt = SB[(t+1) & 1]
            if t < 7:
                rdK(t+1)
            e(f"ds_read_b128 v[56:59], {va} offset:{t*2048}")
            e(f"ds_read_b128 v[60:63], {va} offset:{t*2048+1024}")
            if t < 7:
                e("s_waitcnt lgkmcnt(2)")
                qk(nxt)
                e("s_nop 5")
            else:
                e("s_nop 11")
            e(f"v_max3_f32 v95, v{cur}, v{cur+1}, v{cur+2}")
            for r in range(3, 15, 2):
                e(f"v_max3_f32 v95, v95, v{cur+r}, v{cur+r+1}")
            e(f"v_max_f32 v95, v95, v{cur+15}")
            e("v_mov_b32 v96, v95")
            e("s_nop 1")
            e("v_permlane32_swap_b32 v95, v96")
            e("v_max3_f32 v96, v95, v96, v91")
            e("v_sub_f32 v97, v91, v96")
            e("v_mul_f32 v97, s42, v97")
            e("v_exp_f32 v97, v97")
            e("v_mov_b32 v91, v96")
            e("v_mul_f32 v96, s42, v96")
            for r in range(16):
                e(f"v_fma_f32 v{cur+r}, v{cur+r}, s42, -v96")
            for r in range(16):
                e(f"v_exp_f32 v{cur+r}, v{cur+r}")
            for r in range(32, 48):
                e(f"v_mul_f32 v{r}, v97, v{r}")
            for i in range(8):
                e(f"v_cvt_pk_bf16_f32 v{64+i}, v{cur+2*i}, v{cur+2*i+1}")
            e("s_waitcnt lgkmcnt(0)")
            e("s_nop 1")
            e("v_mfma_f32_32x32x16_bf16 v[32:47], v[56:59], v[64:67], v[32:47]")
            e("v_mfma_f32_32x32x16_bf16 v[32:47], v[60:63], v[68:71], v[32:47]")
            e("s_nop 7")
        if st < 3:
            storestage(b ^ 1)
    e("s_nop 15")
    e("s_barrier")
    e("v_mul_u32_u24 v92, 4352, v5")
    e("v_lshl_add_u32 v92, v1, 2, v92")
    e("s_cmp_eq_u32 s36, 0")
    e("s_cbranch_scc1 k2_low")
    for r in range(16):
        e(f"ds_write_b32 v92, v{32+r} offset:{r*256}")
    e("ds_write_b32 v92, v91 offset:4096")
    e("s_waitcnt lgkmcnt(0)")
    e("s_barrier")
    e("s_endpgm")
    lab("k2_low")
    e("s_barrier")
    for r in range(16):
        e(f"ds_read_b32 v{48+r}, v92 offset:{r*256}")
    e("ds_read_b32 v95, v92 offset:4096")
    e("s_waitcnt lgkmcnt(0)")
    e("v_max_f32 v96, v95, v91")
    e("v_sub_f32 v97, v91, v96")
    e("v_sub_f32 v95, v95, v96")
    e("v_mul_f32 v97, s42, v97")
    e("v_mul_f32 v95, s42, v95")
    e("v_exp_f32 v97, v97")
    e("v_exp_f32 v95, v95")
    e("s_nop 0")
    for r in range(16):
        e(f"v_mul_f32 v{32+r}, v97, v{32+r}")
        e(f"v_fma_f32 v{32+r}, v95, v{48+r}, v{32+r}")
    e("v_mov_b32 v95, v44")
    e("v_mov_b32 v96, v44")
    e("s_nop 1")
    e("v_permlane32_swap_b32 v95, v96")
    e("v_rcp_f32 v96, v96")
    e("s_nop 0")
    for r in range(16):
        e(f"v_mul_f32 v{32+r}, v96, v{32+r}")
    e("v_lshl_add_u32 v7, v4, 3, v7")
    for q in range(4):
        e(f"v_cvt_pk_bf16_f32 v{64+2*q}, v{32+4*q}, v{33+4*q}")
        e(f"v_cvt_pk_bf16_f32 v{65+2*q}, v{34+4*q}, v{35+4*q}")
    for q in range(3):
        e(f"buffer_store_dwordx2 v[{64+2*q}:{65+2*q}], v7, s[32:35], 0 offen offset:{16*q}")
    e("v_cmp_gt_u32 vcc, 32, v1")
    e("v_mov_b32 v9, 0x40000000")
    e("s_nop 1")
    e("v_cndmask_b32 v9, v9, v7, vcc")
    e("buffer_store_dwordx2 v[70:71], v9, s[32:35], 0 offen offset:48")
    e("s_endpgm")
    lab("k2_b")
    srd(24, 20, 21, OFF_QKVB, 2048*1344*2)
    srd(32, 20, 21, OFF_OB, 1835008)
    e("s_sub_u32 s40, s2, 256")
    e("s_lshl_b32 s40, s40, 9")
    e("v_add_u32 v1, s40, v0")
    e("v_lshrrev_b32 v2, 4, v1")
    e("v_and_b32 v3, 15, v1")
    e("v_mul_u32_u24 v3, 56, v3")
    e("s_mov_b32 s40, 2688")
    e("v_mul_lo_u32 v4, v2, s40")
    e("v_add_u32 v4, v4, v3")
    for i in range(7):
        e(f"buffer_load_dwordx2 v[{10+2*i}:{11+2*i}], v4, s[24:27], 0 offen offset:{8*i}")
    for w in range(8):
        e(f"v_subrev_u32 v5, {2*w}, v2")
        e("v_max_i32 v5, 0, v5")
        e("v_mul_lo_u32 v5, v5, s40")
        e(f"v_add_u32 v{100+w}, v5, v3")
    for bt in range(2):
        for ww in range(4):
            w = 4*bt + ww
            for i in range(7):
                e(f"buffer_load_dwordx2 v[{44+14*ww+2*i}:{45+14*ww+2*i}], v{100+w}, s[24:27], 0 offen offset:{896+8*i}")
        for ww in range(4):
            w = 4*bt + ww
            e(f"s_waitcnt vmcnt({7*(3-ww)})")
            e(f"v_mov_b32 v{108+w}, 0")
            for i in range(14):
                e(f"v_dot2_f32_bf16 v{108+w}, v{10+i}, v{44+14*ww+i}, v{108+w}")
            e("s_nop 2")
            e(f"v_cvt_pk_bf16_f32 v6, v{108+w}, v{108+w}")
            e("v_lshlrev_b32 v6, 16, v6")
            e(f"v_mul_f32 v6, {f32hex(SCALE)}, v6")
            e("v_cvt_pk_bf16_f32 v6, v6, v6")
            e("v_lshlrev_b32 v6, 16, v6")
            e(f"v_cmp_le_u32 vcc, {2*w}, v2")
            e("v_mov_b32 v7, 0xce6e6b28")
            e("s_nop 1")
            e(f"v_cndmask_b32 v{108+w}, v7, v6, vcc")
    e("v_max3_f32 v6, v108, v109, v110")
    e("v_max3_f32 v6, v6, v111, v112")
    e("v_max3_f32 v6, v6, v113, v114")
    e("v_max_f32 v6, v6, v115")
    e("v_mov_b32 v7, 0")
    for w in range(8):
        e(f"v_sub_f32 v{108+w}, v{108+w}, v6")
        e(f"v_mul_f32 v{108+w}, 0x3fb8aa3b, v{108+w}")
        e(f"v_exp_f32 v{108+w}, v{108+w}")
        e("s_nop 0")
        e(f"v_add_f32 v7, v7, v{108+w}")
    e("v_rcp_f32 v7, v7")
    e("s_nop 0")
    for w in range(8):
        e(f"v_mul_f32 v{108+w}, v7, v{108+w}")
        e(f"v_cvt_pk_bf16_f32 v{108+w}, v{108+w}, v{108+w}")
        e(f"v_lshlrev_b32 v{108+w}, 16, v{108+w}")
    for i in range(28): e(f"v_mov_b32 v{10+i}, 0")
    for bt in range(2):
        for ww in range(4):
            w = 4*bt + ww
            for i in range(7):
                e(f"buffer_load_dwordx2 v[{44+14*ww+2*i}:{45+14*ww+2*i}], v{100+w}, s[24:27], 0 offen offset:{1792+8*i}")
        for ww in range(4):
            w = 4*bt + ww
            e(f"s_waitcnt vmcnt({7*(3-ww)})")
            for i in range(14):
                e(f"v_lshlrev_b32 v6, 16, v{44+14*ww+i}")
                e(f"v_and_b32 v7, 0xffff0000, v{44+14*ww+i}")
                e(f"v_fmac_f32 v{10+2*i}, v{108+w}, v6")
                e(f"v_fmac_f32 v{11+2*i}, v{108+w}, v7")
    e("s_mov_b32 s40, 896")
    e("v_mul_lo_u32 v4, v2, s40")
    e("v_add_u32 v4, v4, v3")
    for i in range(14):
        e(f"v_cvt_pk_bf16_f32 v{44+i}, v{10+2*i}, v{11+2*i}")
    for i in range(7):
        e(f"buffer_store_dwordx2 v[{44+2*i}:{45+2*i}], v4, s[32:35], 0 offen offset:{8*i}")
    lab("k2_exit")
    e("s_endpgm")
    kd(n, 136)

hdr = open(f"cdna_kernels/{NAME}.s.ref").read().split("; Override")[0]
out = hdr
out += f"; @launch kernel=k1_proj_kernel grid=(256,1,1) block=(256,1,1) lds={GEMM_LDS}\n"
out += f"; @launch kernel=k2_attn_kernel grid=(320,1,1) block=(512,1,1) lds=131072\n"
out += f"; @launch kernel=k3_out_kernel grid=(128,1,1) block=(256,1,1) lds={GEMM_LDS}\n"
out += '.amdgcn_target "amdgcn-amd-amdhsa--gfx950"\n.text\n'
k1(); k2(); k3()
out += "\n".join(L) + "\n"
open(f"cdna_kernels/{NAME}.s", "w").write(out)
```

```python
NAME = "concat_heads__grouped_kv_mqa__sliding_local_dilated__prompt"
OFF_Q = 0x0
OFF_K4 = 0x200000
OFF_VT = 0x220000
OFF_QKVB = 0x300000
OFF_OA = 0x900000
OFF_OB = 0xB00000
XS = 464
WS = 272
WBASE = 128 * XS
GEMM_LDS = WBASE + 224 * WS

L = []
def e(s): L.append("    " + s)
def lab(s): L.append(s + ":")

def srd(dst, lo, hi, off, size):
    e(f"s_add_u32 s{dst}, s{lo}, {off:#x}")
    e(f"s_addc_u32 s{dst+1}, s{hi}, 0")
    e(f"s_and_b32 s{dst+1}, s{dst+1}, 0xffff")
    e(f"s_mov_b32 s{dst+2}, {size:#x}")
    e(f"s_mov_b32 s{dst+3}, 0x00020000")

def kd(name, vgpr=256):
    L.append(f""".section .rodata,"a"
.p2align 6
.amdhsa_kernel {name}
  .amdhsa_next_free_vgpr {vgpr}
  .amdhsa_next_free_sgpr 96
  .amdhsa_accum_offset {vgpr}
  .amdhsa_group_segment_fixed_size 0
  .amdhsa_kernarg_size 88
  .amdhsa_user_sgpr_count 2
  .amdhsa_user_sgpr_kernarg_segment_ptr 1
  .amdhsa_system_sgpr_workgroup_id_x 1
.end_amdhsa_kernel
.text""")

def khead(name):
    L.append(f".globl {name}\n.p2align 8\n.type {name},@function\n{name}:")

def gemm_load_stage(stage, kv):
    for i in range(16):
        e(f"s_mov_b32 s40, {i*8*896 + stage*448}")
        e(f"buffer_load_dwordx4 v[{16+4*i}:{19+4*i}], v1, s[24:27], s40 offen")
    if not kv:
        for i in range(14):
            e(f"s_mul_i32 s40, s36, {i*16 + stage*224}")
            e(f"buffer_load_dwordx4 v[{80+4*i}:{83+4*i}], v3, s[28:31], s40 offen")
    else:
        for i in range(14):
            e(f"s_mov_b32 s40, {(i*16 + stage*224)*56}")
            e(f"buffer_load_dword v{80+2*i}, v3, s[28:31], s40 offen")
            e(f"buffer_load_dword v{81+2*i}, v3, s[44:47], s40 offen")

def gemm_store_stage(kv):
    e("s_waitcnt vmcnt(0)")
    e("s_mov_b64 exec, s[42:43]")
    for i in range(16):
        e(f"ds_write_b128 v2, v[{16+4*i}:{19+4*i}] offset:{i*8*XS}")
    e("s_mov_b64 exec, -1")
    if not kv:
        for i in range(14):
            e(f"ds_write_b128 v4, v[{80+4*i}:{83+4*i}] offset:{i*16*WS}")
    else:
        for i in range(14):
            e(f"v_cndmask_b32 v{80+2*i}, 0, v{80+2*i}, s[48:49]")
            e(f"v_cndmask_b32 v{81+2*i}, 0, v{81+2*i}, s[48:49]")
            e(f"ds_write_b32 v4, v{80+2*i} offset:{i*16*WS}")
            e(f"ds_write_b32 v4, v{81+2*i} offset:{i*16*WS+64}")
    e("s_waitcnt lgkmcnt(0)")
    e("s_barrier")

def gemm_compute(kv):
    def reads(kk, s):
        a = 200 + 16*s; b = a + 8
        e(f"ds_read_b128 v[{a}:{a+3}], v5 offset:{kk*32}")
        if not kv:
            e(f"ds_read_b128 v[{a+4}:{a+7}], v5 offset:{kk*32 + 32*XS}")
        e(f"ds_read_b64_tr_b16 v[{b}:{b+1}], v6 offset:{kk*16*WS}")
        e(f"ds_read_b64_tr_b16 v[{b+2}:{b+3}], v6 offset:{kk*16*WS + 4*WS}")
        e(f"ds_read_b64_tr_b16 v[{b+4}:{b+5}], v6 offset:{kk*16*WS + 64}")
        e(f"ds_read_b64_tr_b16 v[{b+6}:{b+7}], v6 offset:{kk*16*WS + 4*WS + 64}")
    nr = 5 if kv else 6
    reads(0, 0)
    for kk in range(14):
        s = kk & 1
        if kk < 13:
            reads(kk+1, s ^ 1)
            e(f"s_waitcnt lgkmcnt({nr})")
        else:
            e("s_waitcnt lgkmcnt(0)")
        a = 200 + 16*s; b = a + 8
        if not kv:
            for tm in range(2):
                for tn in range(2):
                    acc = 136 + 16*(2*tm+tn)
                    e(f"v_mfma_f32_32x32x16_bf16 v[{acc}:{acc+15}], v[{b+4*tn}:{b+4*tn+3}], v[{a+4*tm}:{a+4*tm+3}], v[{acc}:{acc+15}]")
        else:
            e(f"v_mfma_f32_32x32x16_bf16 v[136:151], v[{b}:{b+3}], v[{a}:{a+3}], v[136:151]")
            e(f"v_mfma_f32_32x32x16_bf16 v[152:167], v[{a}:{a+3}], v[{b+4}:{b+7}], v[152:167]")

def gemm_body(kv, tag):
    e("v_lshrrev_b32 v7, 5, v0")
    e("v_and_b32 v8, 31, v0")
    e("v_add_u32 v9, s41, v7")
    e("s_mov_b32 s40, 896")
    e("v_mul_lo_u32 v1, v9, s40")
    e("v_lshl_add_u32 v1, v8, 4, v1")
    e(f"s_mov_b32 s40, {XS}")
    e("v_mul_lo_u32 v2, v7, s40")
    e("v_lshl_add_u32 v2, v8, 4, v2")
    e("v_cmp_gt_u32 s[42:43], 28, v8")
    e("v_lshrrev_b32 v7, 4, v0")
    e("v_and_b32 v8, 15, v0")
    e(f"s_mov_b32 s40, {WS}")
    e("v_mul_lo_u32 v4, v7, s40")
    if not kv:
        e("v_mul_lo_u32 v3, v7, s36")
        e("v_lshl_add_u32 v3, v8, 4, v3")
        e("s_lshl_b32 s40, s38, 1")
        e("v_add_u32 v3, s40, v3")
        e("v_lshl_add_u32 v4, v8, 4, v4")
    else:
        e("v_mul_u32_u24 v3, 56, v7")
        e("v_lshl_add_u32 v3, v8, 2, v3")
        e("v_lshl_add_u32 v4, v8, 2, v4")
        e("v_cmp_gt_u32 s[48:49], 14, v8")
    e(f"v_add_u32 v4, {WBASE}, v4")
    gemm_load_stage(0, kv)
    e("v_lshrrev_b32 v7, 6, v0")
    e("v_and_b32 v8, 63, v0")
    e("v_and_b32 v9, 31, v8")
    e("v_lshrrev_b32 v10, 5, v8")
    if not kv:
        e("v_lshrrev_b32 v11, 1, v7")
        e("v_and_b32 v12, 1, v7")
        e("v_lshl_add_u32 v13, v11, 6, v9")
    else:
        e("v_lshl_add_u32 v13, v7, 5, v9")
        e("v_mov_b32 v12, 0")
    e(f"s_mov_b32 s40, {XS}")
    e("v_mul_lo_u32 v5, v13, s40")
    e("v_lshl_add_u32 v5, v10, 4, v5")
    e("v_bfe_u32 v14, v8, 2, 2")
    e("v_lshl_add_u32 v14, v10, 3, v14")
    e(f"s_mov_b32 s40, {WS}")
    e("v_mul_lo_u32 v6, v14, s40")
    e("v_bfe_u32 v14, v8, 4, 1")
    e("v_lshlrev_b32 v14, 5, v14")
    e("v_lshl_add_u32 v14, v12, 7, v14")
    e("v_and_b32 v15, 3, v8")
    e("v_lshl_add_u32 v14, v15, 3, v14")
    e("v_add_u32 v6, v6, v14")
    e(f"v_add_u32 v6, {WBASE}, v6")
    for r in range(136, 200):
        e(f"v_mov_b32 v{r}, 0")
    gemm_store_stage(kv)
    gemm_load_stage(1, kv)
    gemm_compute(kv)
    e("s_barrier")
    gemm_store_stage(kv)
    gemm_compute(kv)
    e("s_nop 15")
    e("s_nop 3")
    if not kv:
        e("v_add_u32 v16, s41, v13")
        e("v_mul_lo_u32 v16, v16, s37")
        e("v_lshlrev_b32 v17, 6, v12")
        e("v_lshl_add_u32 v17, v10, 2, v17")
        e("v_add_u32 v17, s38, v17")
        e("v_lshl_add_u32 v16, v17, 1, v16")
        e("s_lshl_b32 s40, s37, 5")
        for tm in range(2):
            for tn in range(2):
                acc = 136 + 16*(2*tm+tn)
                for q in range(4):
                    e(f"v_cvt_pk_bf16_f32 v20, v{acc+4*q}, v{acc+4*q+1}")
                    e(f"v_cvt_pk_bf16_f32 v21, v{acc+4*q+2}, v{acc+4*q+3}")
                    e(f"v_add_u32 v18, {32*tn+8*q}, v17")
                    e("v_cmp_gt_u32 vcc, s39, v18")
                    e("v_mov_b32 v19, 0x40000000")
                    e("s_nop 1")
                    e("v_cndmask_b32 v19, v19, v16, vcc")
                    so = "s40" if tm else "0"
                    e(f"buffer_store_dwordx2 v[20:21], v19, s[32:35], {so} offen offset:{(32*tn+8*q)*2}")
                    e("s_nop 1")
    else:
        e("v_add_u32 v16, s41, v13")
        e("v_lshlrev_b32 v16, 4, v16")
        e("v_lshl_add_u32 v16, v10, 3, v16")
        for q in range(4):
            e(f"v_cvt_pk_bf16_f32 v20, v{136+4*q}, v{136+4*q+1}")
            e(f"v_cvt_pk_bf16_f32 v21, v{136+4*q+2}, v{136+4*q+3}")
            e(f"s_mov_b32 s40, {q*32768}")
            e(f"buffer_store_dwordx2 v[20:21], v16, s[32:35], s40 offen")
            e("s_nop 1")
        e("v_lshlrev_b32 v16, 5, v7")
        e("v_add_u32 v16, s41, v16")
        e("v_lshlrev_b32 v16, 6, v16")
        e("v_lshl_add_u32 v16, v10, 9, v16")
        e("v_lshl_add_u32 v16, v9, 4, v16")
        e("v_cmp_eq_u32 vcc, 28, v9")
        e("v_cmp_lt_u32 s[48:49], 28, v9")
        e("s_mov_b32 s40, 0x3f803f80")
        e("v_mov_b32 v22, s40")
        e("s_nop 1")
        for q in range(4):
            e(f"v_cvt_pk_bf16_f32 v20, v{152+4*q}, v{152+4*q+1}")
            e(f"v_cvt_pk_bf16_f32 v21, v{152+4*q+2}, v{152+4*q+3}")
            e("v_cndmask_b32 v20, v20, v22, vcc")
            e("v_cndmask_b32 v21, v21, v22, vcc")
            e("v_cndmask_b32 v20, v20, 0, s[48:49]")
            e("v_cndmask_b32 v21, v21, 0, s[48:49]")
            e(f"s_mov_b32 s40, {OFF_VT-OFF_K4 + (q>>1)*1024 + (q&1)*8}")
            e(f"buffer_store_dwordx2 v[20:21], v16, s[32:35], s40 offen")
            e("s_nop 1")
    e("s_endpgm")

def k1():
    n = "k1_proj_kernel"
    khead(n)
    e("s_cmp_ge_u32 s2, 256")
    e("s_cbranch_scc1 k1_exit")
    e("s_load_dwordx16 s[4:19], s[0:1], 0")
    e("s_load_dwordx2 s[20:21], s[0:1], 80")
    e("s_and_b32 s22, s2, 15")
    e("s_lshr_b32 s23, s2, 4")
    e("s_lshl_b32 s41, s23, 7")
    e("s_waitcnt lgkmcnt(0)")
    e("s_cmp_eq_u32 s22, 4")
    e("s_cbranch_scc1 k1_kv")
    e("s_cmp_gt_u32 s22, 4")
    e("s_cbranch_scc1 k1_b")
    srd(24, 4, 5, 0, 1835008)
    srd(28, 6, 7, 0, 448*448*2)
    srd(32, 20, 21, OFF_Q, 1835008)
    e("s_mov_b32 s36, 896"); e("s_mov_b32 s37, 896"); e("s_lshl_b32 s38, s22, 7"); e("s_mov_b32 s39, 448")
    e("s_branch k1_main")
    lab("k1_b")
    srd(24, 14, 15, 0, 1835008)
    srd(28, 16, 17, 0, 448*1344*2)
    srd(32, 20, 21, OFF_QKVB, 2048*1344*2)
    e("s_mov_b32 s36, 2688"); e("s_mov_b32 s37, 2688"); e("s_sub_u32 s38, s22, 5"); e("s_lshl_b32 s38, s38, 7"); e("s_mov_b32 s39, 1344")
    lab("k1_main")
    gemm_body(False, "k1")
    lab("k1_kv")
    srd(24, 4, 5, 0, 1835008)
    srd(28, 8, 9, 0, 448*56)
    srd(44, 10, 11, 0, 448*56)
    srd(32, 20, 21, OFF_K4, 0x40000)
    gemm_body(True, "k1kv")
    lab("k1_exit")
    e("s_endpgm")
    kd(n)

def k3():
    n = "k3_out_kernel"
    khead(n)
    e("s_cmp_ge_u32 s2, 128")
    e("s_cbranch_scc1 k3_exit")
    e("s_load_dwordx2 s[4:5], s[0:1], 32")
    e("s_load_dwordx2 s[6:7], s[0:1], 56")
    e("s_load_dwordx2 s[8:9], s[0:1], 64")
    e("s_load_dwordx2 s[20:21], s[0:1], 80")
    e("s_and_b32 s22, s2, 3")
    e("s_lshr_b32 s23, s2, 3")
    e("s_lshl_b32 s41, s23, 7")
    e("s_lshl_b32 s38, s22, 7")
    e("s_mov_b32 s36, 896"); e("s_mov_b32 s37, 1792"); e("s_mov_b32 s39, 448")
    e("s_waitcnt lgkmcnt(0)")
    e("s_bitcmp1_b32 s2, 2")
    e("s_cbranch_scc1 k3_b")
    srd(24, 20, 21, OFF_OA, 1835008)
    srd(28, 4, 5, 0, 448*448*2)
    srd(32, 8, 9, 0, 2048*896*2)
    e("s_branch k3_main")
    lab("k3_b")
    srd(24, 20, 21, OFF_OB, 1835008)
    srd(28, 6, 7, 0, 448*448*2)
    srd(32, 8, 9, 896, 2048*896*2 - 896)
    lab("k3_main")
    gemm_body(False, "k3")
    lab("k3_exit")
    e("s_endpgm")
    kd(n)

import struct
def f32hex(x): return "0x%08x" % struct.unpack("<I", struct.pack("<f", x))[0]
SCALE = 28 ** -0.5
CL = SCALE * 1.4426950408889634

def k2():
    n = "k2_attn_kernel"
    khead(n)
    e("s_cmp_ge_u32 s2, 256")
    e("s_cbranch_scc1 k2_exit")
    e("s_load_dwordx2 s[20:21], s[0:1], 80")
    e("s_waitcnt lgkmcnt(0)")
    srd(24, 20, 21, OFF_Q, 1835008)
    srd(28, 20, 21, OFF_K4, 0x40000)
    srd(32, 20, 21, OFF_OA, 1835008)
    e("v_and_b32 v1, 63, v0")
    e("v_lshrrev_b32 v2, 6, v0")
    e("v_and_b32 v3, 31, v1")
    e("v_lshrrev_b32 v4, 5, v1")
    e("v_and_b32 v5, 3, v2")
    e("v_lshrrev_b32 v6, 2, v2")
    e("s_nop 0")
    e("v_readfirstlane_b32 s36, v6")
    e("v_lshrrev_b32 v7, 8, v0")
    e("v_and_b32 v9, 255, v0")
    e("v_lshlrev_b32 v88, 15, v7")
    e("v_lshl_add_u32 v88, v9, 4, v88")
    e("v_lshlrev_b32 v89, 12, v7")
    e("v_lshl_add_u32 v89, v9, 4, v89")
    e("v_lshlrev_b32 v90, 4, v0")
    def loadstage(st):
        for i in range(4):
            e(f"s_mov_b32 s40, {st*4096 + (i>>1)*16384 + (i&1)*65536}")
            e(f"buffer_load_dwordx4 v[{100+4*i}:{103+4*i}], v88, s[28:31], s40 offen")
        for i in range(4):
            e(f"s_mov_b32 s40, {0x20000 + st*16384 + (i>>1)*65536 + (i&1)*8192}")
            e(f"buffer_load_dwordx4 v[{116+4*i}:{119+4*i}], v90, s[28:31], s40 offen")
    def storestage(b):
        e("s_waitcnt vmcnt(0)")
        for i in range(4):
            e(f"ds_write_b128 v89, v[{100+4*i}:{103+4*i}] offset:{(i>>1)*32768 + (i&1)*8192}" if b == 0 else
              f"ds_write_b128 v132, v[{100+4*i}:{103+4*i}] offset:{(i>>1)*32768 + (i&1)*8192}")
        for i in range(4):
            e(f"ds_write_b128 v{90 if b==0 else 133}, v[{116+4*i}:{119+4*i}] offset:{(i>>1)*32768 + 16384 + (i&1)*8192}")
        e("s_waitcnt lgkmcnt(0)")
        e("s_barrier")
    e("v_add_u32 v132, 65536, v89")
    e("v_add_u32 v133, 65536, v90")
    loadstage(0)
    e("s_lshl_b32 s41, s2, 3")
    e("v_lshrrev_b32 v7, 4, v3")
    e("v_lshl_add_u32 v7, v5, 1, v7")
    e("v_add_u32 v7, s41, v7")
    e("s_mov_b32 s40, 896")
    e("v_mul_lo_u32 v7, v7, s40")
    e("v_and_b32 v9, 15, v3")
    e("v_mul_u32_u24 v9, 56, v9")
    e("v_add_u32 v7, v7, v9")
    e("v_lshl_add_u32 v98, v4, 4, v7")
    e("buffer_load_dwordx4 v[8:11], v98, s[24:27], 0 offen")
    e("buffer_load_dwordx4 v[12:15], v98, s[24:27], 0 offen offset:32")
    e("v_cmp_gt_u32 vcc, 32, v1")
    e("s_waitcnt vmcnt(0)")
    e("s_nop 1")
    e("v_cndmask_b32 v14, 0, v14, vcc")
    e("v_cndmask_b32 v15, 0, v15, vcc")
    for r in range(32, 48): e(f"v_mov_b32 v{r}, 0")
    e("v_mov_b32 v91, 0xff800000")
    e("v_lshlrev_b32 v92, 15, v6")
    e("v_lshl_add_u32 v93, v4, 12, v92")
    e("v_lshl_add_u32 v93, v3, 4, v93")
    e("v_lshl_add_u32 v94, v4, 9, v92")
    e("v_lshl_add_u32 v94, v3, 4, v94")
    e("v_add_u32 v94, 16384, v94")
    e("v_add_u32 v98, 65536, v93")
    e("v_add_u32 v99, 65536, v94")
    e(f"s_mov_b32 s42, {f32hex(CL)}")
    storestage(0)
    SB = [16, 72]
    KB = [48, 48]
    for st in range(4):
        b = st & 1
        ka = "v93" if b == 0 else "v98"
        va = "v94" if b == 0 else "v99"
        if st < 3: loadstage(st+1)
        def rdK(t):
            e(f"ds_read_b128 v[48:51], {ka} offset:{t*512}")
            e(f"ds_read_b128 v[52:55], {ka} offset:{t*512+8192}")
        def qk(sb):
            e(f"v_mfma_f32_32x32x16_bf16 v[{sb}:{sb+15}], v[48:51], v[8:11], 0")
            e(f"v_mfma_f32_32x32x16_bf16 v[{sb}:{sb+15}], v[52:55], v[12:15], v[{sb}:{sb+15}]")
        rdK(0)
        e("s_waitcnt lgkmcnt(0)")
        qk(SB[0])
        for t in range(8):
            cur = SB[t & 1]; nxt = SB[(t+1) & 1]
            if t < 7:
                rdK(t+1)
            e(f"ds_read_b128 v[56:59], {va} offset:{t*2048}")
            e(f"ds_read_b128 v[60:63], {va} offset:{t*2048+1024}")
            if t < 7:
                e("s_waitcnt lgkmcnt(2)")
                qk(nxt)
                e("s_nop 5")
            else:
                e("s_nop 11")
            e(f"v_max3_f32 v95, v{cur}, v{cur+1}, v{cur+2}")
            for r in range(3, 15, 2):
                e(f"v_max3_f32 v95, v95, v{cur+r}, v{cur+r+1}")
            e(f"v_max_f32 v95, v95, v{cur+15}")
            e("v_mov_b32 v96, v95")
            e("s_nop 1")
            e("v_permlane32_swap_b32 v95, v96")
            e("v_max3_f32 v96, v95, v96, v91")
            e("v_sub_f32 v97, v91, v96")
            e("v_mul_f32 v97, s42, v97")
            e("v_exp_f32 v97, v97")
            e("v_mov_b32 v91, v96")
            e("v_mul_f32 v96, s42, v96")
            for r in range(16):
                e(f"v_fma_f32 v{cur+r}, v{cur+r}, s42, -v96")
            for r in range(16):
                e(f"v_exp_f32 v{cur+r}, v{cur+r}")
            for r in range(32, 48):
                e(f"v_mul_f32 v{r}, v97, v{r}")
            for i in range(8):
                e(f"v_cvt_pk_bf16_f32 v{64+i}, v{cur+2*i}, v{cur+2*i+1}")
            e("s_waitcnt lgkmcnt(0)")
            e("s_nop 1")
            e("v_mfma_f32_32x32x16_bf16 v[32:47], v[56:59], v[64:67], v[32:47]")
            e("v_mfma_f32_32x32x16_bf16 v[32:47], v[60:63], v[68:71], v[32:47]")
            e("s_nop 7")
        if st < 3:
            storestage(b ^ 1)
    e("s_nop 15")
    e("s_barrier")
    e("v_mul_u32_u24 v92, 4352, v5")
    e("v_lshl_add_u32 v92, v1, 2, v92")
    e("s_cmp_eq_u32 s36, 0")
    e("s_cbranch_scc1 k2_low")
    for r in range(16):
        e(f"ds_write_b32 v92, v{32+r} offset:{r*256}")
    e("ds_write_b32 v92, v91 offset:4096")
    e("s_waitcnt lgkmcnt(0)")
    e("s_barrier")
    e("v_readfirstlane_b32 s37, v5")
    e("s_cmp_ge_u32 s37, 2")
    e("s_cbranch_scc1 k2_exit")
    e("s_branch k2_b")
    lab("k2_low")
    e("s_barrier")
    for r in range(16):
        e(f"ds_read_b32 v{48+r}, v92 offset:{r*256}")
    e("ds_read_b32 v95, v92 offset:4096")
    e("s_waitcnt lgkmcnt(0)")
    e("v_max_f32 v96, v95, v91")
    e("v_sub_f32 v97, v91, v96")
    e("v_sub_f32 v95, v95, v96")
    e("v_mul_f32 v97, s42, v97")
    e("v_mul_f32 v95, s42, v95")
    e("v_exp_f32 v97, v97")
    e("v_exp_f32 v95, v95")
    e("s_nop 0")
    for r in range(16):
        e(f"v_mul_f32 v{32+r}, v97, v{32+r}")
        e(f"v_fma_f32 v{32+r}, v95, v{48+r}, v{32+r}")
    e("v_mov_b32 v95, v44")
    e("v_mov_b32 v96, v44")
    e("s_nop 1")
    e("v_permlane32_swap_b32 v95, v96")
    e("v_rcp_f32 v96, v96")
    e("s_nop 0")
    for r in range(16):
        e(f"v_mul_f32 v{32+r}, v96, v{32+r}")
    e("v_lshl_add_u32 v7, v4, 3, v7")
    for q in range(4):
        e(f"v_cvt_pk_bf16_f32 v{64+2*q}, v{32+4*q}, v{33+4*q}")
        e(f"v_cvt_pk_bf16_f32 v{65+2*q}, v{34+4*q}, v{35+4*q}")
    for q in range(3):
        e(f"buffer_store_dwordx2 v[{64+2*q}:{65+2*q}], v7, s[32:35], 0 offen offset:{16*q}")
    e("v_cmp_gt_u32 vcc, 32, v1")
    e("v_mov_b32 v9, 0x40000000")
    e("s_nop 1")
    e("v_cndmask_b32 v9, v9, v7, vcc")
    e("buffer_store_dwordx2 v[70:71], v9, s[32:35], 0 offen offset:48")
    e("s_endpgm")
    lab("k2_b")
    srd(24, 20, 21, OFF_QKVB, 2048*1344*2)
    srd(32, 20, 21, OFF_OB, 1835008)
    e("s_lshl_b32 s40, s2, 7")
    e("v_and_b32 v1, 127, v0")
    e("v_add_u32 v1, s40, v1")
    e("v_lshrrev_b32 v2, 4, v1")
    e("v_and_b32 v3, 15, v1")
    e("v_mul_u32_u24 v3, 56, v3")
    e("s_mov_b32 s40, 2688")
    e("v_mul_lo_u32 v4, v2, s40")
    e("v_add_u32 v4, v4, v3")
    for i in range(7):
        e(f"buffer_load_dwordx2 v[{10+2*i}:{11+2*i}], v4, s[24:27], 0 offen offset:{8*i}")
    for w in range(8):
        e(f"v_subrev_u32 v5, {2*w}, v2")
        e("v_max_i32 v5, 0, v5")
        e("v_mul_lo_u32 v5, v5, s40")
        e(f"v_add_u32 v{100+w}, v5, v3")
    for bt in range(2):
        for ww in range(4):
            w = 4*bt + ww
            for i in range(7):
                e(f"buffer_load_dwordx2 v[{44+14*ww+2*i}:{45+14*ww+2*i}], v{100+w}, s[24:27], 0 offen offset:{896+8*i}")
        for ww in range(4):
            w = 4*bt + ww
            e(f"s_waitcnt vmcnt({7*(3-ww)})")
            e(f"v_mov_b32 v{108+w}, 0")
            for i in range(14):
                e(f"v_dot2_f32_bf16 v{108+w}, v{10+i}, v{44+14*ww+i}, v{108+w}")
            e("s_nop 2")
            e(f"v_cvt_pk_bf16_f32 v6, v{108+w}, v{108+w}")
            e("v_lshlrev_b32 v6, 16, v6")
            e(f"v_mul_f32 v6, {f32hex(SCALE)}, v6")
            e("v_cvt_pk_bf16_f32 v6, v6, v6")
            e("v_lshlrev_b32 v6, 16, v6")
            e(f"v_cmp_le_u32 vcc, {2*w}, v2")
            e("v_mov_b32 v7, 0xce6e6b28")
            e("s_nop 1")
            e(f"v_cndmask_b32 v{108+w}, v7, v6, vcc")
    e("v_max3_f32 v6, v108, v109, v110")
    e("v_max3_f32 v6, v6, v111, v112")
    e("v_max3_f32 v6, v6, v113, v114")
    e("v_max_f32 v6, v6, v115")
    e("v_mov_b32 v7, 0")
    for w in range(8):
        e(f"v_sub_f32 v{108+w}, v{108+w}, v6")
        e(f"v_mul_f32 v{108+w}, 0x3fb8aa3b, v{108+w}")
        e(f"v_exp_f32 v{108+w}, v{108+w}")
        e("s_nop 0")
        e(f"v_add_f32 v7, v7, v{108+w}")
    e("v_rcp_f32 v7, v7")
    e("s_nop 0")
    for w in range(8):
        e(f"v_mul_f32 v{108+w}, v7, v{108+w}")
        e(f"v_cvt_pk_bf16_f32 v{108+w}, v{108+w}, v{108+w}")
        e(f"v_lshlrev_b32 v{108+w}, 16, v{108+w}")
    for i in range(28): e(f"v_mov_b32 v{10+i}, 0")
    for bt in range(2):
        for ww in range(4):
            w = 4*bt + ww
            for i in range(7):
                e(f"buffer_load_dwordx2 v[{44+14*ww+2*i}:{45+14*ww+2*i}], v{100+w}, s[24:27], 0 offen offset:{1792+8*i}")
        for ww in range(4):
            w = 4*bt + ww
            e(f"s_waitcnt vmcnt({7*(3-ww)})")
            for i in range(14):
                e(f"v_lshlrev_b32 v6, 16, v{44+14*ww+i}")
                e(f"v_and_b32 v7, 0xffff0000, v{44+14*ww+i}")
                e(f"v_fmac_f32 v{10+2*i}, v{108+w}, v6")
                e(f"v_fmac_f32 v{11+2*i}, v{108+w}, v7")
    e("s_mov_b32 s40, 896")
    e("v_mul_lo_u32 v4, v2, s40")
    e("v_add_u32 v4, v4, v3")
    for i in range(14):
        e(f"v_cvt_pk_bf16_f32 v{44+i}, v{10+2*i}, v{11+2*i}")
    for i in range(7):
        e(f"buffer_store_dwordx2 v[{44+2*i}:{45+2*i}], v4, s[32:35], 0 offen offset:{8*i}")
    lab("k2_exit")
    e("s_endpgm")
    kd(n, 136)

hdr = open(f"cdna_kernels/{NAME}.s.ref").read().split("; Override")[0]
out = hdr
out += f"; @launch kernel=k1_proj_kernel grid=(256,1,1) block=(256,1,1) lds={GEMM_LDS}\n"
out += f"; @launch kernel=k2_attn_kernel grid=(256,1,1) block=(512,1,1) lds=131072\n"
out += f"; @launch kernel=k3_out_kernel grid=(128,1,1) block=(256,1,1) lds={GEMM_LDS}\n"
out += '.amdgcn_target "amdgcn-amd-amdhsa--gfx950"\n.text\n'
k1(); k2(); k3()
out += "\n".join(L) + "\n"
open(f"cdna_kernels/{NAME}.s", "w").write(out)
```

```python
NAME = "concat_heads__grouped_kv_mqa__sliding_local_dilated__prompt"
OFF_Q = 0x0
OFF_K4 = 0x200000
OFF_VT = 0x220000
OFF_QKVB = 0x300000
OFF_OA = 0x900000
OFF_OB = 0xB00000
XS = 464
WS = 272
WBASE = 128 * XS
GEMM_LDS = WBASE + 224 * WS

L = []
def e(s): L.append("    " + s)
def lab(s): L.append(s + ":")

def srd(dst, lo, hi, off, size):
    e(f"s_add_u32 s{dst}, s{lo}, {off:#x}")
    e(f"s_addc_u32 s{dst+1}, s{hi}, 0")
    e(f"s_and_b32 s{dst+1}, s{dst+1}, 0xffff")
    e(f"s_mov_b32 s{dst+2}, {size:#x}")
    e(f"s_mov_b32 s{dst+3}, 0x00020000")

def kd(name, vgpr=256):
    L.append(f""".section .rodata,"a"
.p2align 6
.amdhsa_kernel {name}
  .amdhsa_next_free_vgpr {vgpr}
  .amdhsa_next_free_sgpr 96
  .amdhsa_accum_offset {vgpr}
  .amdhsa_group_segment_fixed_size 0
  .amdhsa_kernarg_size 88
  .amdhsa_user_sgpr_count 2
  .amdhsa_user_sgpr_kernarg_segment_ptr 1
  .amdhsa_system_sgpr_workgroup_id_x 1
.end_amdhsa_kernel
.text""")

def khead(name):
    L.append(f".globl {name}\n.p2align 8\n.type {name},@function\n{name}:")

def gemm_load_stage(stage, kv):
    for i in range(16):
        e(f"s_mov_b32 s40, {i*8*896 + stage*448}")
        e(f"buffer_load_dwordx4 v[{16+4*i}:{19+4*i}], v1, s[24:27], s40 offen")
    if not kv:
        for i in range(14):
            e(f"s_mul_i32 s40, s36, {i*16 + stage*224}")
            e(f"buffer_load_dwordx4 v[{80+4*i}:{83+4*i}], v3, s[28:31], s40 offen")
    else:
        for i in range(14):
            e(f"s_mov_b32 s40, {(i*16 + stage*224)*56}")
            e(f"buffer_load_dword v{80+2*i}, v3, s[28:31], s40 offen")
            e(f"buffer_load_dword v{81+2*i}, v3, s[44:47], s40 offen")

def gemm_store_stage(kv):
    e("s_waitcnt vmcnt(0)")
    e("s_mov_b64 exec, s[42:43]")
    for i in range(16):
        e(f"ds_write_b128 v2, v[{16+4*i}:{19+4*i}] offset:{i*8*XS}")
    e("s_mov_b64 exec, -1")
    if not kv:
        for i in range(14):
            e(f"ds_write_b128 v4, v[{80+4*i}:{83+4*i}] offset:{i*16*WS}")
    else:
        for i in range(14):
            e(f"v_cndmask_b32 v{80+2*i}, 0, v{80+2*i}, s[48:49]")
            e(f"v_cndmask_b32 v{81+2*i}, 0, v{81+2*i}, s[48:49]")
            e(f"ds_write_b32 v4, v{80+2*i} offset:{i*16*WS}")
            e(f"ds_write_b32 v4, v{81+2*i} offset:{i*16*WS+64}")
    e("s_waitcnt lgkmcnt(0)")
    e("s_barrier")

def gemm_compute(kv):
    def reads(kk, s):
        a = 200 + 16*s; b = a + 8
        e(f"ds_read_b128 v[{a}:{a+3}], v5 offset:{kk*32}")
        if not kv:
            e(f"ds_read_b128 v[{a+4}:{a+7}], v5 offset:{kk*32 + 32*XS}")
        e(f"ds_read_b64_tr_b16 v[{b}:{b+1}], v6 offset:{kk*16*WS}")
        e(f"ds_read_b64_tr_b16 v[{b+2}:{b+3}], v6 offset:{kk*16*WS + 4*WS}")
        e(f"ds_read_b64_tr_b16 v[{b+4}:{b+5}], v6 offset:{kk*16*WS + 64}")
        e(f"ds_read_b64_tr_b16 v[{b+6}:{b+7}], v6 offset:{kk*16*WS + 4*WS + 64}")
    nr = 5 if kv else 6
    reads(0, 0)
    for kk in range(14):
        s = kk & 1
        if kk < 13:
            reads(kk+1, s ^ 1)
            e(f"s_waitcnt lgkmcnt({nr})")
        else:
            e("s_waitcnt lgkmcnt(0)")
        a = 200 + 16*s; b = a + 8
        if not kv:
            for tm in range(2):
                for tn in range(2):
                    acc = 136 + 16*(2*tm+tn)
                    e(f"v_mfma_f32_32x32x16_bf16 v[{acc}:{acc+15}], v[{b+4*tn}:{b+4*tn+3}], v[{a+4*tm}:{a+4*tm+3}], v[{acc}:{acc+15}]")
        else:
            e(f"v_mfma_f32_32x32x16_bf16 v[136:151], v[{b}:{b+3}], v[{a}:{a+3}], v[136:151]")
            e(f"v_mfma_f32_32x32x16_bf16 v[152:167], v[{a}:{a+3}], v[{b+4}:{b+7}], v[152:167]")

def gemm_body(kv, tag):
    e("v_lshrrev_b32 v7, 5, v0")
    e("v_and_b32 v8, 31, v0")
    e("v_add_u32 v9, s41, v7")
    e("s_mov_b32 s40, 896")
    e("v_mul_lo_u32 v1, v9, s40")
    e("v_lshl_add_u32 v1, v8, 4, v1")
    e(f"s_mov_b32 s40, {XS}")
    e("v_mul_lo_u32 v2, v7, s40")
    e("v_lshl_add_u32 v2, v8, 4, v2")
    e("v_cmp_gt_u32 s[42:43], 28, v8")
    e("v_lshrrev_b32 v7, 4, v0")
    e("v_and_b32 v8, 15, v0")
    e(f"s_mov_b32 s40, {WS}")
    e("v_mul_lo_u32 v4, v7, s40")
    if not kv:
        e("v_mul_lo_u32 v3, v7, s36")
        e("v_lshl_add_u32 v3, v8, 4, v3")
        e("s_lshl_b32 s40, s38, 1")
        e("v_add_u32 v3, s40, v3")
        e("v_lshl_add_u32 v4, v8, 4, v4")
    else:
        e("v_mul_u32_u24 v3, 56, v7")
        e("v_lshl_add_u32 v3, v8, 2, v3")
        e("v_lshl_add_u32 v4, v8, 2, v4")
        e("v_cmp_gt_u32 s[48:49], 14, v8")
    e(f"v_add_u32 v4, {WBASE}, v4")
    gemm_load_stage(0, kv)
    e("v_lshrrev_b32 v7, 6, v0")
    e("v_and_b32 v8, 63, v0")
    e("v_and_b32 v9, 31, v8")
    e("v_lshrrev_b32 v10, 5, v8")
    if not kv:
        e("v_lshrrev_b32 v11, 1, v7")
        e("v_and_b32 v12, 1, v7")
        e("v_lshl_add_u32 v13, v11, 6, v9")
    else:
        e("v_lshl_add_u32 v13, v7, 5, v9")
        e("v_mov_b32 v12, 0")
    e(f"s_mov_b32 s40, {XS}")
    e("v_mul_lo_u32 v5, v13, s40")
    e("v_lshl_add_u32 v5, v10, 4, v5")
    e("v_bfe_u32 v14, v8, 2, 2")
    e("v_lshl_add_u32 v14, v10, 3, v14")
    e(f"s_mov_b32 s40, {WS}")
    e("v_mul_lo_u32 v6, v14, s40")
    e("v_bfe_u32 v14, v8, 4, 1")
    e("v_lshlrev_b32 v14, 5, v14")
    e("v_lshl_add_u32 v14, v12, 7, v14")
    e("v_and_b32 v15, 3, v8")
    e("v_lshl_add_u32 v14, v15, 3, v14")
    e("v_add_u32 v6, v6, v14")
    e(f"v_add_u32 v6, {WBASE}, v6")
    for r in range(136, 200):
        e(f"v_mov_b32 v{r}, 0")
    gemm_store_stage(kv)
    gemm_load_stage(1, kv)
    gemm_compute(kv)
    e("s_barrier")
    gemm_store_stage(kv)
    gemm_compute(kv)
    e("s_nop 15")
    e("s_nop 3")
    if not kv:
        e("v_add_u32 v16, s41, v13")
        e("v_mul_lo_u32 v16, v16, s37")
        e("v_lshlrev_b32 v17, 6, v12")
        e("v_lshl_add_u32 v17, v10, 2, v17")
        e("v_add_u32 v17, s38, v17")
        e("v_lshl_add_u32 v16, v17, 1, v16")
        e("s_lshl_b32 s40, s37, 5")
        for tm in range(2):
            for tn in range(2):
                acc = 136 + 16*(2*tm+tn)
                for q in range(4):
                    e(f"v_cvt_pk_bf16_f32 v20, v{acc+4*q}, v{acc+4*q+1}")
                    e(f"v_cvt_pk_bf16_f32 v21, v{acc+4*q+2}, v{acc+4*q+3}")
                    e(f"v_add_u32 v18, {32*tn+8*q}, v17")
                    e("v_cmp_gt_u32 vcc, s39, v18")
                    e("v_mov_b32 v19, 0x40000000")
                    e("s_nop 1")
                    e("v_cndmask_b32 v19, v19, v16, vcc")
                    so = "s40" if tm else "0"
                    e(f"buffer_store_dwordx2 v[20:21], v19, s[32:35], {so} offen offset:{(32*tn+8*q)*2}")
                    e("s_nop 1")
    else:
        e("v_add_u32 v16, s41, v13")
        e("v_lshlrev_b32 v16, 4, v16")
        e("v_lshl_add_u32 v16, v10, 3, v16")
        for q in range(4):
            e(f"v_cvt_pk_bf16_f32 v20, v{136+4*q}, v{136+4*q+1}")
            e(f"v_cvt_pk_bf16_f32 v21, v{136+4*q+2}, v{136+4*q+3}")
            e(f"s_mov_b32 s40, {q*32768}")
            e(f"buffer_store_dwordx2 v[20:21], v16, s[32:35], s40 offen")
            e("s_nop 1")
        e("v_lshlrev_b32 v16, 5, v7")
        e("v_add_u32 v16, s41, v16")
        e("v_lshlrev_b32 v16, 6, v16")
        e("v_lshl_add_u32 v16, v10, 9, v16")
        e("v_lshl_add_u32 v16, v9, 4, v16")
        e("v_cmp_eq_u32 vcc, 28, v9")
        e("v_cmp_lt_u32 s[48:49], 28, v9")
        e("s_mov_b32 s40, 0x3f803f80")
        e("v_mov_b32 v22, s40")
        e("s_nop 1")
        for q in range(4):
            e(f"v_cvt_pk_bf16_f32 v20, v{152+4*q}, v{152+4*q+1}")
            e(f"v_cvt_pk_bf16_f32 v21, v{152+4*q+2}, v{152+4*q+3}")
            e("v_cndmask_b32 v20, v20, v22, vcc")
            e("v_cndmask_b32 v21, v21, v22, vcc")
            e("v_cndmask_b32 v20, v20, 0, s[48:49]")
            e("v_cndmask_b32 v21, v21, 0, s[48:49]")
            e(f"s_mov_b32 s40, {OFF_VT-OFF_K4 + (q>>1)*1024 + (q&1)*8}")
            e(f"buffer_store_dwordx2 v[20:21], v16, s[32:35], s40 offen")
            e("s_nop 1")
    e("s_endpgm")

def k1():
    n = "k1_proj_kernel"
    khead(n)
    e("s_cmp_ge_u32 s2, 256")
    e("s_cbranch_scc1 k1_exit")
    e("s_load_dwordx16 s[4:19], s[0:1], 0")
    e("s_load_dwordx2 s[20:21], s[0:1], 80")
    e("s_and_b32 s22, s2, 15")
    e("s_lshr_b32 s23, s2, 4")
    e("s_lshl_b32 s41, s23, 7")
    e("s_waitcnt lgkmcnt(0)")
    e("s_cmp_eq_u32 s22, 4")
    e("s_cbranch_scc1 k1_kv")
    e("s_cmp_gt_u32 s22, 4")
    e("s_cbranch_scc1 k1_b")
    srd(24, 4, 5, 0, 1835008)
    srd(28, 6, 7, 0, 448*448*2)
    srd(32, 20, 21, OFF_Q, 1835008)
    e("s_mov_b32 s36, 896"); e("s_mov_b32 s37, 896"); e("s_lshl_b32 s38, s22, 7"); e("s_mov_b32 s39, 448")
    e("s_branch k1_main")
    lab("k1_b")
    srd(24, 14, 15, 0, 1835008)
    srd(28, 16, 17, 0, 448*1344*2)
    srd(32, 20, 21, OFF_QKVB, 2048*1344*2)
    e("s_mov_b32 s36, 2688"); e("s_mov_b32 s37, 2688"); e("s_sub_u32 s38, s22, 5"); e("s_lshl_b32 s38, s38, 7"); e("s_mov_b32 s39, 1344")
    lab("k1_main")
    gemm_body(False, "k1")
    lab("k1_kv")
    srd(24, 4, 5, 0, 1835008)
    srd(28, 8, 9, 0, 448*56)
    srd(44, 10, 11, 0, 448*56)
    srd(32, 20, 21, OFF_K4, 0x40000)
    gemm_body(True, "k1kv")
    lab("k1_exit")
    e("s_endpgm")
    kd(n)

def k3():
    n = "k3_out_kernel"
    khead(n)
    e("s_cmp_ge_u32 s2, 128")
    e("s_cbranch_scc1 k3_exit")
    e("s_load_dwordx2 s[4:5], s[0:1], 32")
    e("s_load_dwordx2 s[6:7], s[0:1], 56")
    e("s_load_dwordx2 s[8:9], s[0:1], 64")
    e("s_load_dwordx2 s[20:21], s[0:1], 80")
    e("s_and_b32 s22, s2, 3")
    e("s_lshr_b32 s23, s2, 3")
    e("s_lshl_b32 s41, s23, 7")
    e("s_lshl_b32 s38, s22, 7")
    e("s_mov_b32 s36, 896"); e("s_mov_b32 s37, 1792"); e("s_mov_b32 s39, 448")
    e("s_waitcnt lgkmcnt(0)")
    e("s_bitcmp1_b32 s2, 2")
    e("s_cbranch_scc1 k3_b")
    srd(24, 20, 21, OFF_OA, 1835008)
    srd(28, 4, 5, 0, 448*448*2)
    srd(32, 8, 9, 0, 2048*896*2)
    e("s_branch k3_main")
    lab("k3_b")
    srd(24, 20, 21, OFF_OB, 1835008)
    srd(28, 6, 7, 0, 448*448*2)
    srd(32, 8, 9, 896, 2048*896*2 - 896)
    lab("k3_main")
    gemm_body(False, "k3")
    lab("k3_exit")
    e("s_endpgm")
    kd(n)

import struct
def f32hex(x): return "0x%08x" % struct.unpack("<I", struct.pack("<f", x))[0]
SCALE = 28 ** -0.5
CL = SCALE * 1.4426950408889634

def k2():
    n = "k2_attn_kernel"
    khead(n)
    e("s_cmp_ge_u32 s2, 256")
    e("s_cbranch_scc1 k2_exit")
    e("s_load_dwordx2 s[20:21], s[0:1], 80")
    e("s_waitcnt lgkmcnt(0)")
    srd(24, 20, 21, OFF_Q, 1835008)
    srd(28, 20, 21, OFF_K4, 0x40000)
    srd(32, 20, 21, OFF_OA, 1835008)
    e("v_and_b32 v1, 63, v0")
    e("v_lshrrev_b32 v2, 6, v0")
    e("v_and_b32 v3, 31, v1")
    e("v_lshrrev_b32 v4, 5, v1")
    e("v_and_b32 v5, 3, v2")
    e("v_lshrrev_b32 v6, 2, v2")
    e("s_nop 0")
    e("v_readfirstlane_b32 s36, v6")
    e("s_cmp_ge_u32 s36, 2")
    e("s_cbranch_scc1 k2_b")
    e("v_lshrrev_b32 v7, 8, v0")
    e("v_and_b32 v9, 255, v0")
    e("v_lshlrev_b32 v88, 15, v7")
    e("v_lshl_add_u32 v88, v9, 4, v88")
    e("v_lshlrev_b32 v89, 12, v7")
    e("v_lshl_add_u32 v89, v9, 4, v89")
    e("v_lshlrev_b32 v90, 4, v0")
    def loadstage(st):
        for i in range(4):
            e(f"s_mov_b32 s40, {st*4096 + (i>>1)*16384 + (i&1)*65536}")
            e(f"buffer_load_dwordx4 v[{100+4*i}:{103+4*i}], v88, s[28:31], s40 offen")
        for i in range(4):
            e(f"s_mov_b32 s40, {0x20000 + st*16384 + (i>>1)*65536 + (i&1)*8192}")
            e(f"buffer_load_dwordx4 v[{116+4*i}:{119+4*i}], v90, s[28:31], s40 offen")
    def storestage(b):
        e("s_waitcnt vmcnt(0)")
        for i in range(4):
            e(f"ds_write_b128 v89, v[{100+4*i}:{103+4*i}] offset:{(i>>1)*32768 + (i&1)*8192}" if b == 0 else
              f"ds_write_b128 v132, v[{100+4*i}:{103+4*i}] offset:{(i>>1)*32768 + (i&1)*8192}")
        for i in range(4):
            e(f"ds_write_b128 v{90 if b==0 else 133}, v[{116+4*i}:{119+4*i}] offset:{(i>>1)*32768 + 16384 + (i&1)*8192}")
        e("s_waitcnt lgkmcnt(0)")
        e("s_barrier")
    e("v_add_u32 v132, 65536, v89")
    e("v_add_u32 v133, 65536, v90")
    loadstage(0)
    e("s_lshl_b32 s41, s2, 3")
    e("v_lshrrev_b32 v7, 4, v3")
    e("v_lshl_add_u32 v7, v5, 1, v7")
    e("v_add_u32 v7, s41, v7")
    e("s_mov_b32 s40, 896")
    e("v_mul_lo_u32 v7, v7, s40")
    e("v_and_b32 v9, 15, v3")
    e("v_mul_u32_u24 v9, 56, v9")
    e("v_add_u32 v7, v7, v9")
    e("v_lshl_add_u32 v98, v4, 4, v7")
    e("buffer_load_dwordx4 v[8:11], v98, s[24:27], 0 offen")
    e("buffer_load_dwordx4 v[12:15], v98, s[24:27], 0 offen offset:32")
    e("v_cmp_gt_u32 vcc, 32, v1")
    e("s_waitcnt vmcnt(0)")
    e("s_nop 1")
    e("v_cndmask_b32 v14, 0, v14, vcc")
    e("v_cndmask_b32 v15, 0, v15, vcc")
    for r in range(32, 48): e(f"v_mov_b32 v{r}, 0")
    e("v_mov_b32 v91, 0xff800000")
    e("v_lshlrev_b32 v92, 15, v6")
    e("v_lshl_add_u32 v93, v4, 12, v92")
    e("v_lshl_add_u32 v93, v3, 4, v93")
    e("v_lshl_add_u32 v94, v4, 9, v92")
    e("v_lshl_add_u32 v94, v3, 4, v94")
    e("v_add_u32 v94, 16384, v94")
    e("v_add_u32 v98, 65536, v93")
    e("v_add_u32 v99, 65536, v94")
    e(f"s_mov_b32 s42, {f32hex(CL)}")
    storestage(0)
    SB = [16, 72]
    KB = [48, 48]
    for st in range(4):
        b = st & 1
        ka = "v93" if b == 0 else "v98"
        va = "v94" if b == 0 else "v99"
        if st < 3: loadstage(st+1)
        def rdK(t):
            e(f"ds_read_b128 v[48:51], {ka} offset:{t*512}")
            e(f"ds_read_b128 v[52:55], {ka} offset:{t*512+8192}")
        def qk(sb):
            e(f"v_mfma_f32_32x32x16_bf16 v[{sb}:{sb+15}], v[48:51], v[8:11], 0")
            e(f"v_mfma_f32_32x32x16_bf16 v[{sb}:{sb+15}], v[52:55], v[12:15], v[{sb}:{sb+15}]")
        rdK(0)
        e("s_waitcnt lgkmcnt(0)")
        qk(SB[0])
        for t in range(8):
            cur = SB[t & 1]; nxt = SB[(t+1) & 1]
            if t < 7:
                rdK(t+1)
            e(f"ds_read_b128 v[56:59], {va} offset:{t*2048}")
            e(f"ds_read_b128 v[60:63], {va} offset:{t*2048+1024}")
            if t < 7:
                e("s_waitcnt lgkmcnt(2)")
                qk(nxt)
                e("s_nop 5")
            else:
                e("s_nop 11")
            e(f"v_max3_f32 v95, v{cur}, v{cur+1}, v{cur+2}")
            for r in range(3, 15, 2):
                e(f"v_max3_f32 v95, v95, v{cur+r}, v{cur+r+1}")
            e(f"v_max_f32 v95, v95, v{cur+15}")
            e("v_mov_b32 v96, v95")
            e("s_nop 1")
            e("v_permlane32_swap_b32 v95, v96")
            e("v_max3_f32 v96, v95, v96, v91")
            e("v_sub_f32 v97, v91, v96")
            e("v_mul_f32 v97, s42, v97")
            e("v_exp_f32 v97, v97")
            e("v_mov_b32 v91, v96")
            e("v_mul_f32 v96, s42, v96")
            for r in range(16):
                e(f"v_fma_f32 v{cur+r}, v{cur+r}, s42, -v96")
            for r in range(16):
                e(f"v_exp_f32 v{cur+r}, v{cur+r}")
            for r in range(32, 48):
                e(f"v_mul_f32 v{r}, v97, v{r}")
            for i in range(8):
                e(f"v_cvt_pk_bf16_f32 v{64+i}, v{cur+2*i}, v{cur+2*i+1}")
            e("s_waitcnt lgkmcnt(0)")
            e("s_nop 1")
            e("v_mfma_f32_32x32x16_bf16 v[32:47], v[56:59], v[64:67], v[32:47]")
            e("v_mfma_f32_32x32x16_bf16 v[32:47], v[60:63], v[68:71], v[32:47]")
            e("s_nop 7")
        if st < 3:
            storestage(b ^ 1)
    e("s_nop 15")
    e("s_barrier")
    e("v_mul_u32_u24 v92, 4352, v5")
    e("v_lshl_add_u32 v92, v1, 2, v92")
    e("s_cmp_eq_u32 s36, 0")
    e("s_cbranch_scc1 k2_low")
    for r in range(16):
        e(f"ds_write_b32 v92, v{32+r} offset:{r*256}")
    e("ds_write_b32 v92, v91 offset:4096")
    e("s_waitcnt lgkmcnt(0)")
    e("s_barrier")
    e("s_endpgm")
    lab("k2_low")
    e("s_barrier")
    for r in range(16):
        e(f"ds_read_b32 v{48+r}, v92 offset:{r*256}")
    e("ds_read_b32 v95, v92 offset:4096")
    e("s_waitcnt lgkmcnt(0)")
    e("v_max_f32 v96, v95, v91")
    e("v_sub_f32 v97, v91, v96")
    e("v_sub_f32 v95, v95, v96")
    e("v_mul_f32 v97, s42, v97")
    e("v_mul_f32 v95, s42, v95")
    e("v_exp_f32 v97, v97")
    e("v_exp_f32 v95, v95")
    e("s_nop 0")
    for r in range(16):
        e(f"v_mul_f32 v{32+r}, v97, v{32+r}")
        e(f"v_fma_f32 v{32+r}, v95, v{48+r}, v{32+r}")
    e("v_mov_b32 v95, v44")
    e("v_mov_b32 v96, v44")
    e("s_nop 1")
    e("v_permlane32_swap_b32 v95, v96")
    e("v_rcp_f32 v96, v96")
    e("s_nop 0")
    for r in range(16):
        e(f"v_mul_f32 v{32+r}, v96, v{32+r}")
    e("v_lshl_add_u32 v7, v4, 3, v7")
    for q in range(4):
        e(f"v_cvt_pk_bf16_f32 v{64+2*q}, v{32+4*q}, v{33+4*q}")
        e(f"v_cvt_pk_bf16_f32 v{65+2*q}, v{34+4*q}, v{35+4*q}")
    for q in range(3):
        e(f"buffer_store_dwordx2 v[{64+2*q}:{65+2*q}], v7, s[32:35], 0 offen offset:{16*q}")
    e("v_cmp_gt_u32 vcc, 32, v1")
    e("v_mov_b32 v9, 0x40000000")
    e("s_nop 1")
    e("v_cndmask_b32 v9, v9, v7, vcc")
    e("buffer_store_dwordx2 v[70:71], v9, s[32:35], 0 offen offset:48")
    e("s_endpgm")
    lab("k2_b")
    srd(24, 20, 21, OFF_QKVB, 2048*1344*2)
    srd(32, 20, 21, OFF_OB, 1835008)
    e("s_lshl_b32 s40, s2, 7")
    e("v_and_b32 v1, 127, v0")
    e("v_add_u32 v1, s40, v1")
    e("v_lshrrev_b32 v2, 4, v1")
    e("v_and_b32 v3, 15, v1")
    e("v_mul_u32_u24 v3, 56, v3")
    e("s_mov_b32 s40, 2688")
    e("v_mul_lo_u32 v4, v2, s40")
    e("v_add_u32 v4, v4, v3")
    for i in range(7):
        e(f"buffer_load_dwordx2 v[{10+2*i}:{11+2*i}], v4, s[24:27], 0 offen offset:{8*i}")
    for w in range(8):
        e(f"v_subrev_u32 v5, {2*w}, v2")
        e("v_max_i32 v5, 0, v5")
        e("v_mul_lo_u32 v5, v5, s40")
        e(f"v_add_u32 v{100+w}, v5, v3")
    for bt in range(2):
        for ww in range(4):
            w = 4*bt + ww
            for i in range(7):
                e(f"buffer_load_dwordx2 v[{44+14*ww+2*i}:{45+14*ww+2*i}], v{100+w}, s[24:27], 0 offen offset:{896+8*i}")
        for ww in range(4):
            w = 4*bt + ww
            e(f"s_waitcnt vmcnt({7*(3-ww)})")
            e(f"v_mov_b32 v{108+w}, 0")
            for i in range(14):
                e(f"v_dot2_f32_bf16 v{108+w}, v{10+i}, v{44+14*ww+i}, v{108+w}")
            e("s_nop 2")
            e(f"v_cvt_pk_bf16_f32 v6, v{108+w}, v{108+w}")
            e("v_lshlrev_b32 v6, 16, v6")
            e(f"v_mul_f32 v6, {f32hex(SCALE)}, v6")
            e("v_cvt_pk_bf16_f32 v6, v6, v6")
            e("v_lshlrev_b32 v6, 16, v6")
            e(f"v_cmp_le_u32 vcc, {2*w}, v2")
            e("v_mov_b32 v7, 0xce6e6b28")
            e("s_nop 1")
            e(f"v_cndmask_b32 v{108+w}, v7, v6, vcc")
        e("s_barrier")
    e("v_max3_f32 v6, v108, v109, v110")
    e("v_max3_f32 v6, v6, v111, v112")
    e("v_max3_f32 v6, v6, v113, v114")
    e("v_max_f32 v6, v6, v115")
    e("v_mov_b32 v7, 0")
    for w in range(8):
        e(f"v_sub_f32 v{108+w}, v{108+w}, v6")
        e(f"v_mul_f32 v{108+w}, 0x3fb8aa3b, v{108+w}")
        e(f"v_exp_f32 v{108+w}, v{108+w}")
        e("s_nop 0")
        e(f"v_add_f32 v7, v7, v{108+w}")
    e("v_rcp_f32 v7, v7")
    e("s_nop 0")
    for w in range(8):
        e(f"v_mul_f32 v{108+w}, v7, v{108+w}")
        e(f"v_cvt_pk_bf16_f32 v{108+w}, v{108+w}, v{108+w}")
        e(f"v_lshlrev_b32 v{108+w}, 16, v{108+w}")
    for i in range(28): e(f"v_mov_b32 v{10+i}, 0")
    for bt in range(2):
        for ww in range(4):
            w = 4*bt + ww
            for i in range(7):
                e(f"buffer_load_dwordx2 v[{44+14*ww+2*i}:{45+14*ww+2*i}], v{100+w}, s[24:27], 0 offen offset:{1792+8*i}")
        for ww in range(4):
            w = 4*bt + ww
            e(f"s_waitcnt vmcnt({7*(3-ww)})")
            for i in range(14):
                e(f"v_lshlrev_b32 v6, 16, v{44+14*ww+i}")
                e(f"v_and_b32 v7, 0xffff0000, v{44+14*ww+i}")
                e(f"v_fmac_f32 v{10+2*i}, v{108+w}, v6")
                e(f"v_fmac_f32 v{11+2*i}, v{108+w}, v7")
        if bt == 0: e("s_barrier")
    e("s_mov_b32 s40, 896")
    e("v_mul_lo_u32 v4, v2, s40")
    e("v_add_u32 v4, v4, v3")
    for i in range(14):
        e(f"v_cvt_pk_bf16_f32 v{44+i}, v{10+2*i}, v{11+2*i}")
    for i in range(7):
        e(f"buffer_store_dwordx2 v[{44+2*i}:{45+2*i}], v4, s[32:35], 0 offen offset:{8*i}")
    lab("k2_exit")
    e("s_endpgm")
    kd(n, 136)

hdr = open(f"cdna_kernels/{NAME}.s.ref").read().split("; Override")[0]
out = hdr
out += f"; @launch kernel=k1_proj_kernel grid=(256,1,1) block=(256,1,1) lds={GEMM_LDS}\n"
out += f"; @launch kernel=k2_attn_kernel grid=(256,1,1) block=(640,1,1) lds=131072\n"
out += f"; @launch kernel=k3_out_kernel grid=(128,1,1) block=(256,1,1) lds={GEMM_LDS}\n"
out += '.amdgcn_target "amdgcn-amd-amdhsa--gfx950"\n.text\n'
k1(); k2(); k3()
out += "\n".join(L) + "\n"
open(f"cdna_kernels/{NAME}.s", "w").write(out)
```

```python
NAME = "concat_heads__grouped_kv_mqa__sliding_local_dilated__prompt"
OFF_Q = 0x0
OFF_K4 = 0x200000
OFF_VT = 0x220000
OFF_QKVB = 0x300000
OFF_OA = 0x900000
OFF_OB = 0xB00000
XS = 464
WS = 272
WBASE = 128 * XS
GEMM_LDS = WBASE + 224 * WS

L = []
def e(s): L.append("    " + s)
def lab(s): L.append(s + ":")

def srd(dst, lo, hi, off, size):
    e(f"s_add_u32 s{dst}, s{lo}, {off:#x}")
    e(f"s_addc_u32 s{dst+1}, s{hi}, 0")
    e(f"s_and_b32 s{dst+1}, s{dst+1}, 0xffff")
    e(f"s_mov_b32 s{dst+2}, {size:#x}")
    e(f"s_mov_b32 s{dst+3}, 0x00020000")

def kd(name, vgpr=256):
    L.append(f""".section .rodata,"a"
.p2align 6
.amdhsa_kernel {name}
  .amdhsa_next_free_vgpr {vgpr}
  .amdhsa_next_free_sgpr 96
  .amdhsa_accum_offset {vgpr}
  .amdhsa_group_segment_fixed_size 0
  .amdhsa_kernarg_size 88
  .amdhsa_user_sgpr_count 2
  .amdhsa_user_sgpr_kernarg_segment_ptr 1
  .amdhsa_system_sgpr_workgroup_id_x 1
.end_amdhsa_kernel
.text""")

def khead(name):
    L.append(f".globl {name}\n.p2align 8\n.type {name},@function\n{name}:")

def gemm_load_stage(stage, kv):
    for i in range(16):
        e(f"s_mov_b32 s40, {i*8*896 + stage*448}")
        e(f"buffer_load_dwordx4 v[{16+4*i}:{19+4*i}], v1, s[24:27], s40 offen")
    if not kv:
        for i in range(14):
            e(f"s_mul_i32 s40, s36, {i*16 + stage*224}")
            e(f"buffer_load_dwordx4 v[{80+4*i}:{83+4*i}], v3, s[28:31], s40 offen")
    else:
        for i in range(14):
            e(f"s_mov_b32 s40, {(i*16 + stage*224)*56}")
            e(f"buffer_load_dword v{80+2*i}, v3, s[28:31], s40 offen")
            e(f"buffer_load_dword v{81+2*i}, v3, s[44:47], s40 offen")

def gemm_store_stage(kv):
    e("s_waitcnt vmcnt(0)")
    e("s_mov_b64 exec, s[42:43]")
    for i in range(16):
        e(f"ds_write_b128 v2, v[{16+4*i}:{19+4*i}] offset:{i*8*XS}")
    e("s_mov_b64 exec, -1")
    if not kv:
        for i in range(14):
            e(f"ds_write_b128 v4, v[{80+4*i}:{83+4*i}] offset:{i*16*WS}")
    else:
        for i in range(14):
            e(f"v_cndmask_b32 v{80+2*i}, 0, v{80+2*i}, s[48:49]")
            e(f"v_cndmask_b32 v{81+2*i}, 0, v{81+2*i}, s[48:49]")
            e(f"ds_write_b32 v4, v{80+2*i} offset:{i*16*WS}")
            e(f"ds_write_b32 v4, v{81+2*i} offset:{i*16*WS+64}")
    e("s_waitcnt lgkmcnt(0)")
    e("s_barrier")

def gemm_compute(kv):
    def reads(kk, s):
        a = 200 + 16*s; b = a + 8
        e(f"ds_read_b128 v[{a}:{a+3}], v5 offset:{kk*32}")
        if not kv:
            e(f"ds_read_b128 v[{a+4}:{a+7}], v5 offset:{kk*32 + 32*XS}")
        e(f"ds_read_b64_tr_b16 v[{b}:{b+1}], v6 offset:{kk*16*WS}")
        e(f"ds_read_b64_tr_b16 v[{b+2}:{b+3}], v6 offset:{kk*16*WS + 4*WS}")
        e(f"ds_read_b64_tr_b16 v[{b+4}:{b+5}], v6 offset:{kk*16*WS + 64}")
        e(f"ds_read_b64_tr_b16 v[{b+6}:{b+7}], v6 offset:{kk*16*WS + 4*WS + 64}")
    nr = 5 if kv else 6
    reads(0, 0)
    for kk in range(14):
        s = kk & 1
        if kk < 13:
            reads(kk+1, s ^ 1)
            e(f"s_waitcnt lgkmcnt({nr})")
        else:
            e("s_waitcnt lgkmcnt(0)")
        a = 200 + 16*s; b = a + 8
        if not kv:
            for tm in range(2):
                for tn in range(2):
                    acc = 136 + 16*(2*tm+tn)
                    e(f"v_mfma_f32_32x32x16_bf16 v[{acc}:{acc+15}], v[{b+4*tn}:{b+4*tn+3}], v[{a+4*tm}:{a+4*tm+3}], v[{acc}:{acc+15}]")
        else:
            e(f"v_mfma_f32_32x32x16_bf16 v[136:151], v[{b}:{b+3}], v[{a}:{a+3}], v[136:151]")
            e(f"v_mfma_f32_32x32x16_bf16 v[152:167], v[{a}:{a+3}], v[{b+4}:{b+7}], v[152:167]")

def gemm_body(kv, tag):
    e("v_lshrrev_b32 v7, 5, v0")
    e("v_and_b32 v8, 31, v0")
    e("v_add_u32 v9, s41, v7")
    e("s_mov_b32 s40, 896")
    e("v_mul_lo_u32 v1, v9, s40")
    e("v_lshl_add_u32 v1, v8, 4, v1")
    e(f"s_mov_b32 s40, {XS}")
    e("v_mul_lo_u32 v2, v7, s40")
    e("v_lshl_add_u32 v2, v8, 4, v2")
    e("v_cmp_gt_u32 s[42:43], 28, v8")
    e("v_lshrrev_b32 v7, 4, v0")
    e("v_and_b32 v8, 15, v0")
    e(f"s_mov_b32 s40, {WS}")
    e("v_mul_lo_u32 v4, v7, s40")
    if not kv:
        e("v_mul_lo_u32 v3, v7, s36")
        e("v_lshl_add_u32 v3, v8, 4, v3")
        e("s_lshl_b32 s40, s38, 1")
        e("v_add_u32 v3, s40, v3")
        e("v_lshl_add_u32 v4, v8, 4, v4")
    else:
        e("v_mul_u32_u24 v3, 56, v7")
        e("v_lshl_add_u32 v3, v8, 2, v3")
        e("v_lshl_add_u32 v4, v8, 2, v4")
        e("v_cmp_gt_u32 s[48:49], 14, v8")
    e(f"v_add_u32 v4, {WBASE}, v4")
    gemm_load_stage(0, kv)
    e("v_lshrrev_b32 v7, 6, v0")
    e("v_and_b32 v8, 63, v0")
    e("v_and_b32 v9, 31, v8")
    e("v_lshrrev_b32 v10, 5, v8")
    if not kv:
        e("v_lshrrev_b32 v11, 1, v7")
        e("v_and_b32 v12, 1, v7")
        e("v_lshl_add_u32 v13, v11, 6, v9")
    else:
        e("v_lshl_add_u32 v13, v7, 5, v9")
        e("v_mov_b32 v12, 0")
    e(f"s_mov_b32 s40, {XS}")
    e("v_mul_lo_u32 v5, v13, s40")
    e("v_lshl_add_u32 v5, v10, 4, v5")
    e("v_bfe_u32 v14, v8, 2, 2")
    e("v_lshl_add_u32 v14, v10, 3, v14")
    e(f"s_mov_b32 s40, {WS}")
    e("v_mul_lo_u32 v6, v14, s40")
    e("v_bfe_u32 v14, v8, 4, 1")
    e("v_lshlrev_b32 v14, 5, v14")
    e("v_lshl_add_u32 v14, v12, 7, v14")
    e("v_and_b32 v15, 3, v8")
    e("v_lshl_add_u32 v14, v15, 3, v14")
    e("v_add_u32 v6, v6, v14")
    e(f"v_add_u32 v6, {WBASE}, v6")
    for r in range(136, 200):
        e(f"v_mov_b32 v{r}, 0")
    gemm_store_stage(kv)
    gemm_load_stage(1, kv)
    gemm_compute(kv)
    e("s_barrier")
    gemm_store_stage(kv)
    gemm_compute(kv)
    e("s_nop 15")
    e("s_nop 3")
    if not kv:
        e("v_add_u32 v16, s41, v13")
        e("v_mul_lo_u32 v16, v16, s37")
        e("v_lshlrev_b32 v17, 6, v12")
        e("v_lshl_add_u32 v17, v10, 2, v17")
        e("v_add_u32 v17, s38, v17")
        e("v_lshl_add_u32 v16, v17, 1, v16")
        e("s_lshl_b32 s40, s37, 5")
        for tm in range(2):
            for tn in range(2):
                acc = 136 + 16*(2*tm+tn)
                for q in range(4):
                    e(f"v_cvt_pk_bf16_f32 v20, v{acc+4*q}, v{acc+4*q+1}")
                    e(f"v_cvt_pk_bf16_f32 v21, v{acc+4*q+2}, v{acc+4*q+3}")
                    e(f"v_add_u32 v18, {32*tn+8*q}, v17")
                    e("v_cmp_gt_u32 vcc, s39, v18")
                    e("v_mov_b32 v19, 0x40000000")
                    e("s_nop 1")
                    e("v_cndmask_b32 v19, v19, v16, vcc")
                    so = "s40" if tm else "0"
                    e(f"buffer_store_dwordx2 v[20:21], v19, s[32:35], {so} offen offset:{(32*tn+8*q)*2}")
                    e("s_nop 1")
    else:
        e("v_add_u32 v16, s41, v13")
        e("v_lshlrev_b32 v16, 4, v16")
        e("v_lshl_add_u32 v16, v10, 3, v16")
        for q in range(4):
            e(f"v_cvt_pk_bf16_f32 v20, v{136+4*q}, v{136+4*q+1}")
            e(f"v_cvt_pk_bf16_f32 v21, v{136+4*q+2}, v{136+4*q+3}")
            e(f"s_mov_b32 s40, {q*32768}")
            e(f"buffer_store_dwordx2 v[20:21], v16, s[32:35], s40 offen")
            e("s_nop 1")
        e("v_lshlrev_b32 v16, 5, v7")
        e("v_add_u32 v16, s41, v16")
        e("v_lshlrev_b32 v16, 6, v16")
        e("v_lshl_add_u32 v16, v10, 9, v16")
        e("v_lshl_add_u32 v16, v9, 4, v16")
        e("v_cmp_eq_u32 vcc, 28, v9")
        e("v_cmp_lt_u32 s[48:49], 28, v9")
        e("s_mov_b32 s40, 0x3f803f80")
        e("v_mov_b32 v22, s40")
        e("s_nop 1")
        for q in range(4):
            e(f"v_cvt_pk_bf16_f32 v20, v{152+4*q}, v{152+4*q+1}")
            e(f"v_cvt_pk_bf16_f32 v21, v{152+4*q+2}, v{152+4*q+3}")
            e("v_cndmask_b32 v20, v20, v22, vcc")
            e("v_cndmask_b32 v21, v21, v22, vcc")
            e("v_cndmask_b32 v20, v20, 0, s[48:49]")
            e("v_cndmask_b32 v21, v21, 0, s[48:49]")
            e(f"s_mov_b32 s40, {OFF_VT-OFF_K4 + (q>>1)*1024 + (q&1)*8}")
            e(f"buffer_store_dwordx2 v[20:21], v16, s[32:35], s40 offen")
            e("s_nop 1")
    e("s_endpgm")

def k1():
    n = "k1_proj_kernel"
    khead(n)
    e("s_cmp_ge_u32 s2, 256")
    e("s_cbranch_scc1 k1_exit")
    e("s_load_dwordx16 s[4:19], s[0:1], 0")
    e("s_load_dwordx2 s[20:21], s[0:1], 80")
    e("s_and_b32 s22, s2, 15")
    e("s_lshr_b32 s23, s2, 4")
    e("s_lshl_b32 s41, s23, 7")
    e("s_waitcnt lgkmcnt(0)")
    e("s_cmp_eq_u32 s22, 4")
    e("s_cbranch_scc1 k1_kv")
    e("s_cmp_gt_u32 s22, 4")
    e("s_cbranch_scc1 k1_b")
    srd(24, 4, 5, 0, 1835008)
    srd(28, 6, 7, 0, 448*448*2)
    srd(32, 20, 21, OFF_Q, 1835008)
    e("s_mov_b32 s36, 896"); e("s_mov_b32 s37, 896"); e("s_lshl_b32 s38, s22, 7"); e("s_mov_b32 s39, 448")
    e("s_branch k1_main")
    lab("k1_b")
    srd(24, 14, 15, 0, 1835008)
    srd(28, 16, 17, 0, 448*1344*2)
    srd(32, 20, 21, OFF_QKVB, 2048*1344*2)
    e("s_mov_b32 s36, 2688"); e("s_mov_b32 s37, 2688"); e("s_sub_u32 s38, s22, 5"); e("s_lshl_b32 s38, s38, 7"); e("s_mov_b32 s39, 1344")
    lab("k1_main")
    gemm_body(False, "k1")
    lab("k1_kv")
    srd(24, 4, 5, 0, 1835008)
    srd(28, 8, 9, 0, 448*56)
    srd(44, 10, 11, 0, 448*56)
    srd(32, 20, 21, OFF_K4, 0x40000)
    gemm_body(True, "k1kv")
    lab("k1_exit")
    e("s_endpgm")
    kd(n)

def k3():
    n = "k3_out_kernel"
    khead(n)
    e("s_cmp_ge_u32 s2, 128")
    e("s_cbranch_scc1 k3_exit")
    e("s_load_dwordx2 s[4:5], s[0:1], 32")
    e("s_load_dwordx2 s[6:7], s[0:1], 56")
    e("s_load_dwordx2 s[8:9], s[0:1], 64")
    e("s_load_dwordx2 s[20:21], s[0:1], 80")
    e("s_and_b32 s22, s2, 3")
    e("s_lshr_b32 s23, s2, 3")
    e("s_lshl_b32 s41, s23, 7")
    e("s_lshl_b32 s38, s22, 7")
    e("s_mov_b32 s36, 896"); e("s_mov_b32 s37, 1792"); e("s_mov_b32 s39, 448")
    e("s_waitcnt lgkmcnt(0)")
    e("s_bitcmp1_b32 s2, 2")
    e("s_cbranch_scc1 k3_b")
    srd(24, 20, 21, OFF_OA, 1835008)
    srd(28, 4, 5, 0, 448*448*2)
    srd(32, 8, 9, 0, 2048*896*2)
    e("s_branch k3_main")
    lab("k3_b")
    srd(24, 20, 21, OFF_OB, 1835008)
    srd(28, 6, 7, 0, 448*448*2)
    srd(32, 8, 9, 896, 2048*896*2 - 896)
    lab("k3_main")
    gemm_body(False, "k3")
    lab("k3_exit")
    e("s_endpgm")
    kd(n)

import struct
def f32hex(x): return "0x%08x" % struct.unpack("<I", struct.pack("<f", x))[0]
SCALE = 28 ** -0.5
CL = SCALE * 1.4426950408889634

def k2():
    n = "k2_attn_kernel"
    khead(n)
    e("s_cmp_ge_u32 s2, 256")
    e("s_cbranch_scc1 k2_exit")
    e("s_load_dwordx2 s[20:21], s[0:1], 80")
    e("s_waitcnt lgkmcnt(0)")
    srd(24, 20, 21, OFF_Q, 1835008)
    srd(28, 20, 21, OFF_K4, 0x40000)
    srd(32, 20, 21, OFF_OA, 1835008)
    e("v_and_b32 v1, 63, v0")
    e("v_lshrrev_b32 v2, 6, v0")
    e("v_and_b32 v3, 31, v1")
    e("v_lshrrev_b32 v4, 5, v1")
    e("v_and_b32 v5, 3, v2")
    e("v_lshrrev_b32 v6, 2, v2")
    e("s_nop 0")
    e("v_readfirstlane_b32 s36, v6")
    e("s_cmp_ge_u32 s36, 2")
    e("s_cbranch_scc1 k2_b")
    e("v_lshrrev_b32 v7, 8, v0")
    e("v_and_b32 v9, 255, v0")
    e("v_lshlrev_b32 v88, 15, v7")
    e("v_lshl_add_u32 v88, v9, 4, v88")
    e("v_lshlrev_b32 v89, 12, v7")
    e("v_lshl_add_u32 v89, v9, 4, v89")
    e("v_lshlrev_b32 v90, 4, v0")
    def loadstage(st):
        for i in range(4):
            e(f"s_mov_b32 s40, {st*4096 + (i>>1)*16384 + (i&1)*65536}")
            e(f"buffer_load_dwordx4 v[{100+4*i}:{103+4*i}], v88, s[28:31], s40 offen")
        for i in range(4):
            e(f"s_mov_b32 s40, {0x20000 + st*16384 + (i>>1)*65536 + (i&1)*8192}")
            e(f"buffer_load_dwordx4 v[{116+4*i}:{119+4*i}], v90, s[28:31], s40 offen")
    def storestage(b):
        e("s_waitcnt vmcnt(0)")
        for i in range(4):
            e(f"ds_write_b128 v89, v[{100+4*i}:{103+4*i}] offset:{(i>>1)*32768 + (i&1)*8192}" if b == 0 else
              f"ds_write_b128 v132, v[{100+4*i}:{103+4*i}] offset:{(i>>1)*32768 + (i&1)*8192}")
        for i in range(4):
            e(f"ds_write_b128 v{90 if b==0 else 133}, v[{116+4*i}:{119+4*i}] offset:{(i>>1)*32768 + 16384 + (i&1)*8192}")
        e("s_waitcnt lgkmcnt(0)")
        e("s_barrier")
    e("v_add_u32 v132, 65536, v89")
    e("v_add_u32 v133, 65536, v90")
    loadstage(0)
    e("s_lshl_b32 s41, s2, 3")
    e("v_lshrrev_b32 v7, 4, v3")
    e("v_lshl_add_u32 v7, v5, 1, v7")
    e("v_add_u32 v7, s41, v7")
    e("s_mov_b32 s40, 896")
    e("v_mul_lo_u32 v7, v7, s40")
    e("v_and_b32 v9, 15, v3")
    e("v_mul_u32_u24 v9, 56, v9")
    e("v_add_u32 v7, v7, v9")
    e("v_lshl_add_u32 v98, v4, 4, v7")
    e("buffer_load_dwordx4 v[8:11], v98, s[24:27], 0 offen")
    e("buffer_load_dwordx4 v[12:15], v98, s[24:27], 0 offen offset:32")
    e("v_cmp_gt_u32 vcc, 32, v1")
    e("s_waitcnt vmcnt(0)")
    e("s_nop 1")
    e("v_cndmask_b32 v14, 0, v14, vcc")
    e("v_cndmask_b32 v15, 0, v15, vcc")
    for r in range(32, 48): e(f"v_mov_b32 v{r}, 0")
    e("v_mov_b32 v91, 0xff800000")
    e("v_lshlrev_b32 v92, 15, v6")
    e("v_lshl_add_u32 v93, v4, 12, v92")
    e("v_lshl_add_u32 v93, v3, 4, v93")
    e("v_lshl_add_u32 v94, v4, 9, v92")
    e("v_lshl_add_u32 v94, v3, 4, v94")
    e("v_add_u32 v94, 16384, v94")
    e("v_add_u32 v98, 65536, v93")
    e("v_add_u32 v99, 65536, v94")
    e(f"s_mov_b32 s42, {f32hex(CL)}")
    storestage(0)
    SB = [16, 72]
    KB = [48, 48]
    for st in range(4):
        b = st & 1
        ka = "v93" if b == 0 else "v98"
        va = "v94" if b == 0 else "v99"
        if st < 3: loadstage(st+1)
        def rdK(t):
            e(f"ds_read_b128 v[48:51], {ka} offset:{t*512}")
            e(f"ds_read_b128 v[52:55], {ka} offset:{t*512+8192}")
        def qk(sb):
            e(f"v_mfma_f32_32x32x16_bf16 v[{sb}:{sb+15}], v[48:51], v[8:11], 0")
            e(f"v_mfma_f32_32x32x16_bf16 v[{sb}:{sb+15}], v[52:55], v[12:15], v[{sb}:{sb+15}]")
        rdK(0)
        e("s_waitcnt lgkmcnt(0)")
        qk(SB[0])
        for t in range(8):
            cur = SB[t & 1]; nxt = SB[(t+1) & 1]
            if t < 7:
                rdK(t+1)
            e(f"ds_read_b128 v[56:59], {va} offset:{t*2048}")
            e(f"ds_read_b128 v[60:63], {va} offset:{t*2048+1024}")
            if t < 7:
                e("s_waitcnt lgkmcnt(2)")
                qk(nxt)
                e("s_nop 5")
            else:
                e("s_nop 11")
            e(f"v_max3_f32 v95, v{cur}, v{cur+1}, v{cur+2}")
            for r in range(3, 15, 2):
                e(f"v_max3_f32 v95, v95, v{cur+r}, v{cur+r+1}")
            e(f"v_max_f32 v95, v95, v{cur+15}")
            e("v_mov_b32 v96, v95")
            e("s_nop 1")
            e("v_permlane32_swap_b32 v95, v96")
            e("v_max3_f32 v96, v95, v96, v91")
            e("v_cmp_gt_f32 vcc, v96, v91")
            e("v_sub_f32 v97, v91, v96")
            e("v_mul_f32 v97, s42, v97")
            e("v_exp_f32 v97, v97")
            e("v_mov_b32 v91, v96")
            e("v_mul_f32 v96, s42, v96")
            for r in range(16):
                e(f"v_fma_f32 v{cur+r}, v{cur+r}, s42, -v96")
            for r in range(16):
                e(f"v_exp_f32 v{cur+r}, v{cur+r}")
            for i in range(8):
                e(f"v_cvt_pk_bf16_f32 v{64+i}, v{cur+2*i}, v{cur+2*i+1}")
            e(f"s_cbranch_vccz k2_sk{st}_{t}")
            for r in range(32, 48):
                e(f"v_mul_f32 v{r}, v97, v{r}")
            lab(f"k2_sk{st}_{t}")
            e("s_waitcnt lgkmcnt(0)")
            e("s_nop 1")
            e("v_mfma_f32_32x32x16_bf16 v[32:47], v[56:59], v[64:67], v[32:47]")
            e("v_mfma_f32_32x32x16_bf16 v[32:47], v[60:63], v[68:71], v[32:47]")
            e("s_nop 7")
        if st < 3:
            storestage(b ^ 1)
    e("s_nop 15")
    e("s_barrier")
    e("v_mul_u32_u24 v92, 4352, v5")
    e("v_lshl_add_u32 v92, v1, 2, v92")
    e("s_cmp_eq_u32 s36, 0")
    e("s_cbranch_scc1 k2_low")
    for r in range(16):
        e(f"ds_write_b32 v92, v{32+r} offset:{r*256}")
    e("ds_write_b32 v92, v91 offset:4096")
    e("s_waitcnt lgkmcnt(0)")
    e("s_barrier")
    e("s_endpgm")
    lab("k2_low")
    e("s_barrier")
    for r in range(16):
        e(f"ds_read_b32 v{48+r}, v92 offset:{r*256}")
    e("ds_read_b32 v95, v92 offset:4096")
    e("s_waitcnt lgkmcnt(0)")
    e("v_max_f32 v96, v95, v91")
    e("v_sub_f32 v97, v91, v96")
    e("v_sub_f32 v95, v95, v96")
    e("v_mul_f32 v97, s42, v97")
    e("v_mul_f32 v95, s42, v95")
    e("v_exp_f32 v97, v97")
    e("v_exp_f32 v95, v95")
    e("s_nop 0")
    for r in range(16):
        e(f"v_mul_f32 v{32+r}, v97, v{32+r}")
        e(f"v_fma_f32 v{32+r}, v95, v{48+r}, v{32+r}")
    e("v_mov_b32 v95, v44")
    e("v_mov_b32 v96, v44")
    e("s_nop 1")
    e("v_permlane32_swap_b32 v95, v96")
    e("v_rcp_f32 v96, v96")
    e("s_nop 0")
    for r in range(16):
        e(f"v_mul_f32 v{32+r}, v96, v{32+r}")
    e("v_lshl_add_u32 v7, v4, 3, v7")
    for q in range(4):
        e(f"v_cvt_pk_bf16_f32 v{64+2*q}, v{32+4*q}, v{33+4*q}")
        e(f"v_cvt_pk_bf16_f32 v{65+2*q}, v{34+4*q}, v{35+4*q}")
    for q in range(3):
        e(f"buffer_store_dwordx2 v[{64+2*q}:{65+2*q}], v7, s[32:35], 0 offen offset:{16*q}")
    e("v_cmp_gt_u32 vcc, 32, v1")
    e("v_mov_b32 v9, 0x40000000")
    e("s_nop 1")
    e("v_cndmask_b32 v9, v9, v7, vcc")
    e("buffer_store_dwordx2 v[70:71], v9, s[32:35], 0 offen offset:48")
    e("s_endpgm")
    lab("k2_b")
    srd(24, 20, 21, OFF_QKVB, 2048*1344*2)
    srd(32, 20, 21, OFF_OB, 1835008)
    e("s_lshl_b32 s40, s2, 7")
    e("v_and_b32 v1, 127, v0")
    e("v_add_u32 v1, s40, v1")
    e("v_lshrrev_b32 v2, 4, v1")
    e("v_and_b32 v3, 15, v1")
    e("v_mul_u32_u24 v3, 56, v3")
    e("s_mov_b32 s40, 2688")
    e("v_mul_lo_u32 v4, v2, s40")
    e("v_add_u32 v4, v4, v3")
    for i in range(7):
        e(f"buffer_load_dwordx2 v[{10+2*i}:{11+2*i}], v4, s[24:27], 0 offen offset:{8*i}")
    for w in range(8):
        e(f"v_subrev_u32 v5, {2*w}, v2")
        e("v_max_i32 v5, 0, v5")
        e("v_mul_lo_u32 v5, v5, s40")
        e(f"v_add_u32 v{100+w}, v5, v3")
    for bt in range(2):
        for ww in range(4):
            w = 4*bt + ww
            for i in range(7):
                e(f"buffer_load_dwordx2 v[{44+14*ww+2*i}:{45+14*ww+2*i}], v{100+w}, s[24:27], 0 offen offset:{896+8*i}")
        for ww in range(4):
            w = 4*bt + ww
            e(f"s_waitcnt vmcnt({7*(3-ww)})")
            e(f"v_mov_b32 v{108+w}, 0")
            for i in range(14):
                e(f"v_dot2_f32_bf16 v{108+w}, v{10+i}, v{44+14*ww+i}, v{108+w}")
            e("s_nop 2")
            e(f"v_cvt_pk_bf16_f32 v6, v{108+w}, v{108+w}")
            e("v_lshlrev_b32 v6, 16, v6")
            e(f"v_mul_f32 v6, {f32hex(SCALE)}, v6")
            e("v_cvt_pk_bf16_f32 v6, v6, v6")
            e("v_lshlrev_b32 v6, 16, v6")
            e(f"v_cmp_le_u32 vcc, {2*w}, v2")
            e("v_mov_b32 v7, 0xce6e6b28")
            e("s_nop 1")
            e(f"v_cndmask_b32 v{108+w}, v7, v6, vcc")
        e("s_barrier")
    e("v_max3_f32 v6, v108, v109, v110")
    e("v_max3_f32 v6, v6, v111, v112")
    e("v_max3_f32 v6, v6, v113, v114")
    e("v_max_f32 v6, v6, v115")
    e("v_mov_b32 v7, 0")
    for w in range(8):
        e(f"v_sub_f32 v{108+w}, v{108+w}, v6")
        e(f"v_mul_f32 v{108+w}, 0x3fb8aa3b, v{108+w}")
        e(f"v_exp_f32 v{108+w}, v{108+w}")
        e("s_nop 0")
        e(f"v_add_f32 v7, v7, v{108+w}")
    e("v_rcp_f32 v7, v7")
    e("s_nop 0")
    for w in range(8):
        e(f"v_mul_f32 v{108+w}, v7, v{108+w}")
        e(f"v_cvt_pk_bf16_f32 v{108+w}, v{108+w}, v{108+w}")
        e(f"v_lshlrev_b32 v{108+w}, 16, v{108+w}")
    for i in range(28): e(f"v_mov_b32 v{10+i}, 0")
    for bt in range(2):
        for ww in range(4):
            w = 4*bt + ww
            for i in range(7):
                e(f"buffer_load_dwordx2 v[{44+14*ww+2*i}:{45+14*ww+2*i}], v{100+w}, s[24:27], 0 offen offset:{1792+8*i}")
        for ww in range(4):
            w = 4*bt + ww
            e(f"s_waitcnt vmcnt({7*(3-ww)})")
            for i in range(14):
                e(f"v_lshlrev_b32 v6, 16, v{44+14*ww+i}")
                e(f"v_and_b32 v7, 0xffff0000, v{44+14*ww+i}")
                e(f"v_fmac_f32 v{10+2*i}, v{108+w}, v6")
                e(f"v_fmac_f32 v{11+2*i}, v{108+w}, v7")
        if bt == 0: e("s_barrier")
    e("s_mov_b32 s40, 896")
    e("v_mul_lo_u32 v4, v2, s40")
    e("v_add_u32 v4, v4, v3")
    for i in range(14):
        e(f"v_cvt_pk_bf16_f32 v{44+i}, v{10+2*i}, v{11+2*i}")
    for i in range(7):
        e(f"buffer_store_dwordx2 v[{44+2*i}:{45+2*i}], v4, s[32:35], 0 offen offset:{8*i}")
    lab("k2_exit")
    e("s_endpgm")
    kd(n, 136)

hdr = open(f"cdna_kernels/{NAME}.s.ref").read().split("; Override")[0]
out = hdr
out += f"; @launch kernel=k1_proj_kernel grid=(256,1,1) block=(256,1,1) lds={GEMM_LDS}\n"
out += f"; @launch kernel=k2_attn_kernel grid=(256,1,1) block=(640,1,1) lds=131072\n"
out += f"; @launch kernel=k3_out_kernel grid=(128,1,1) block=(256,1,1) lds={GEMM_LDS}\n"
out += '.amdgcn_target "amdgcn-amd-amdhsa--gfx950"\n.text\n'
k1(); k2(); k3()
out += "\n".join(L) + "\n"
open(f"cdna_kernels/{NAME}.s", "w").write(out)
```

```python
NAME = "concat_heads__grouped_kv_mqa__sliding_local_dilated__prompt"
OFF_Q = 0x0
OFF_K4 = 0x200000
OFF_VT = 0x220000
OFF_QKVB = 0x300000
OFF_OA = 0x900000
OFF_OB = 0xB00000
XS = 464
WS = 272
WBASE = 128 * XS
GEMM_LDS = WBASE + 224 * WS

L = []
def e(s): L.append("    " + s)
def lab(s): L.append(s + ":")

def srd(dst, lo, hi, off, size):
    e(f"s_add_u32 s{dst}, s{lo}, {off:#x}")
    e(f"s_addc_u32 s{dst+1}, s{hi}, 0")
    e(f"s_and_b32 s{dst+1}, s{dst+1}, 0xffff")
    e(f"s_mov_b32 s{dst+2}, {size:#x}")
    e(f"s_mov_b32 s{dst+3}, 0x00020000")

def kd(name, vgpr=256):
    L.append(f""".section .rodata,"a"
.p2align 6
.amdhsa_kernel {name}
  .amdhsa_next_free_vgpr {vgpr}
  .amdhsa_next_free_sgpr 96
  .amdhsa_accum_offset {vgpr}
  .amdhsa_group_segment_fixed_size 0
  .amdhsa_kernarg_size 88
  .amdhsa_user_sgpr_count 2
  .amdhsa_user_sgpr_kernarg_segment_ptr 1
  .amdhsa_system_sgpr_workgroup_id_x 1
.end_amdhsa_kernel
.text""")

def khead(name):
    L.append(f".globl {name}\n.p2align 8\n.type {name},@function\n{name}:")

def gemm_load_stage(stage, kv):
    for i in range(16):
        e(f"s_mov_b32 s40, {i*8*896 + stage*448}")
        e(f"buffer_load_dwordx4 v[{16+4*i}:{19+4*i}], v1, s[24:27], s40 offen")
    if not kv:
        for i in range(14):
            e(f"s_mul_i32 s40, s36, {i*16 + stage*224}")
            e(f"buffer_load_dwordx4 v[{80+4*i}:{83+4*i}], v3, s[28:31], s40 offen")
    else:
        for i in range(14):
            e(f"s_mov_b32 s40, {(i*16 + stage*224)*56}")
            e(f"buffer_load_dword v{80+2*i}, v3, s[28:31], s40 offen")
            e(f"buffer_load_dword v{81+2*i}, v3, s[44:47], s40 offen")

def gemm_store_stage(kv):
    e("s_waitcnt vmcnt(0)")
    e("s_mov_b64 exec, s[42:43]")
    for i in range(16):
        e(f"ds_write_b128 v2, v[{16+4*i}:{19+4*i}] offset:{i*8*XS}")
    e("s_mov_b64 exec, -1")
    if not kv:
        for i in range(14):
            e(f"ds_write_b128 v4, v[{80+4*i}:{83+4*i}] offset:{i*16*WS}")
    else:
        for i in range(14):
            e(f"v_cndmask_b32 v{80+2*i}, 0, v{80+2*i}, s[48:49]")
            e(f"v_cndmask_b32 v{81+2*i}, 0, v{81+2*i}, s[48:49]")
            e(f"ds_write_b32 v4, v{80+2*i} offset:{i*16*WS}")
            e(f"ds_write_b32 v4, v{81+2*i} offset:{i*16*WS+64}")
    e("s_waitcnt lgkmcnt(0)")
    e("s_barrier")

UID = [0]
def gemm_compute(kv):
    UID[0] += 1
    lb = f"gk{UID[0]}"
    def reads(kk, s):
        a = 200 + 16*s; b = a + 8
        e(f"ds_read_b128 v[{a}:{a+3}], v232 offset:{kk*32}")
        if not kv:
            e(f"ds_read_b128 v[{a+4}:{a+7}], v232 offset:{kk*32 + 32*XS}")
        e(f"ds_read_b64_tr_b16 v[{b}:{b+1}], v233 offset:{kk*16*WS}")
        e(f"ds_read_b64_tr_b16 v[{b+2}:{b+3}], v233 offset:{kk*16*WS + 4*WS}")
        e(f"ds_read_b64_tr_b16 v[{b+4}:{b+5}], v233 offset:{kk*16*WS + 64}")
        e(f"ds_read_b64_tr_b16 v[{b+6}:{b+7}], v233 offset:{kk*16*WS + 4*WS + 64}")
    def mm(s):
        a = 200 + 16*s; b = a + 8
        if not kv:
            for tm in range(2):
                for tn in range(2):
                    acc = 136 + 16*(2*tm+tn)
                    e(f"v_mfma_f32_32x32x16_bf16 v[{acc}:{acc+15}], v[{b+4*tn}:{b+4*tn+3}], v[{a+4*tm}:{a+4*tm+3}], v[{acc}:{acc+15}]")
        else:
            e(f"v_mfma_f32_32x32x16_bf16 v[136:151], v[{b}:{b+3}], v[{a}:{a+3}], v[136:151]")
            e(f"v_mfma_f32_32x32x16_bf16 v[152:167], v[{a}:{a+3}], v[{b+4}:{b+7}], v[152:167]")
    nr = 5 if kv else 6
    e("v_mov_b32 v232, v5")
    e("v_mov_b32 v233, v6")
    e("s_mov_b32 s50, 0")
    reads(0, 0)
    lab(lb)
    reads(1, 1)
    e(f"s_waitcnt lgkmcnt({nr})")
    mm(0)
    reads(2, 0)
    e(f"s_waitcnt lgkmcnt({nr})")
    mm(1)
    e("v_add_u32 v232, 64, v232")
    e(f"v_add_u32 v233, {32*WS}, v233")
    e("s_add_u32 s50, s50, 1")
    e("s_cmp_lt_u32 s50, 7")
    e(f"s_cbranch_scc1 {lb}")
    e("s_waitcnt lgkmcnt(0)")

def gemm_body(kv, tag):
    e("v_lshrrev_b32 v7, 5, v0")
    e("v_and_b32 v8, 31, v0")
    e("v_add_u32 v9, s41, v7")
    e("s_mov_b32 s40, 896")
    e("v_mul_lo_u32 v1, v9, s40")
    e("v_lshl_add_u32 v1, v8, 4, v1")
    e(f"s_mov_b32 s40, {XS}")
    e("v_mul_lo_u32 v2, v7, s40")
    e("v_lshl_add_u32 v2, v8, 4, v2")
    e("v_cmp_gt_u32 s[42:43], 28, v8")
    e("v_lshrrev_b32 v7, 4, v0")
    e("v_and_b32 v8, 15, v0")
    e(f"s_mov_b32 s40, {WS}")
    e("v_mul_lo_u32 v4, v7, s40")
    if not kv:
        e("v_mul_lo_u32 v3, v7, s36")
        e("v_lshl_add_u32 v3, v8, 4, v3")
        e("s_lshl_b32 s40, s38, 1")
        e("v_add_u32 v3, s40, v3")
        e("v_lshl_add_u32 v4, v8, 4, v4")
    else:
        e("v_mul_u32_u24 v3, 56, v7")
        e("v_lshl_add_u32 v3, v8, 2, v3")
        e("v_lshl_add_u32 v4, v8, 2, v4")
        e("v_cmp_gt_u32 s[48:49], 14, v8")
    e(f"v_add_u32 v4, {WBASE}, v4")
    gemm_load_stage(0, kv)
    e("v_lshrrev_b32 v7, 6, v0")
    e("v_and_b32 v8, 63, v0")
    e("v_and_b32 v9, 31, v8")
    e("v_lshrrev_b32 v10, 5, v8")
    if not kv:
        e("v_lshrrev_b32 v11, 1, v7")
        e("v_and_b32 v12, 1, v7")
        e("v_lshl_add_u32 v13, v11, 6, v9")
    else:
        e("v_lshl_add_u32 v13, v7, 5, v9")
        e("v_mov_b32 v12, 0")
    e(f"s_mov_b32 s40, {XS}")
    e("v_mul_lo_u32 v5, v13, s40")
    e("v_lshl_add_u32 v5, v10, 4, v5")
    e("v_bfe_u32 v14, v8, 2, 2")
    e("v_lshl_add_u32 v14, v10, 3, v14")
    e(f"s_mov_b32 s40, {WS}")
    e("v_mul_lo_u32 v6, v14, s40")
    e("v_bfe_u32 v14, v8, 4, 1")
    e("v_lshlrev_b32 v14, 5, v14")
    e("v_lshl_add_u32 v14, v12, 7, v14")
    e("v_and_b32 v15, 3, v8")
    e("v_lshl_add_u32 v14, v15, 3, v14")
    e("v_add_u32 v6, v6, v14")
    e(f"v_add_u32 v6, {WBASE}, v6")
    for r in range(136, 200):
        e(f"v_mov_b32 v{r}, 0")
    gemm_store_stage(kv)
    gemm_load_stage(1, kv)
    gemm_compute(kv)
    e("s_barrier")
    gemm_store_stage(kv)
    gemm_compute(kv)
    e("s_nop 15")
    e("s_nop 3")
    if not kv:
        e("v_add_u32 v16, s41, v13")
        e("v_mul_lo_u32 v16, v16, s37")
        e("v_lshlrev_b32 v17, 6, v12")
        e("v_lshl_add_u32 v17, v10, 2, v17")
        e("v_add_u32 v17, s38, v17")
        e("v_lshl_add_u32 v16, v17, 1, v16")
        e("s_lshl_b32 s40, s37, 5")
        for tm in range(2):
            for tn in range(2):
                acc = 136 + 16*(2*tm+tn)
                for q in range(4):
                    e(f"v_cvt_pk_bf16_f32 v20, v{acc+4*q}, v{acc+4*q+1}")
                    e(f"v_cvt_pk_bf16_f32 v21, v{acc+4*q+2}, v{acc+4*q+3}")
                    e(f"v_add_u32 v18, {32*tn+8*q}, v17")
                    e("v_cmp_gt_u32 vcc, s39, v18")
                    e("v_mov_b32 v19, 0x40000000")
                    e("s_nop 1")
                    e("v_cndmask_b32 v19, v19, v16, vcc")
                    so = "s40" if tm else "0"
                    e(f"buffer_store_dwordx2 v[20:21], v19, s[32:35], {so} offen offset:{(32*tn+8*q)*2}")
                    e("s_nop 1")
    else:
        e("v_add_u32 v16, s41, v13")
        e("v_lshlrev_b32 v16, 4, v16")
        e("v_lshl_add_u32 v16, v10, 3, v16")
        for q in range(4):
            e(f"v_cvt_pk_bf16_f32 v20, v{136+4*q}, v{136+4*q+1}")
            e(f"v_cvt_pk_bf16_f32 v21, v{136+4*q+2}, v{136+4*q+3}")
            e(f"s_mov_b32 s40, {q*32768}")
            e(f"buffer_store_dwordx2 v[20:21], v16, s[32:35], s40 offen")
            e("s_nop 1")
        e("v_lshlrev_b32 v16, 5, v7")
        e("v_add_u32 v16, s41, v16")
        e("v_lshlrev_b32 v16, 6, v16")
        e("v_lshl_add_u32 v16, v10, 9, v16")
        e("v_lshl_add_u32 v16, v9, 4, v16")
        e("v_cmp_eq_u32 vcc, 28, v9")
        e("v_cmp_lt_u32 s[48:49], 28, v9")
        e("s_mov_b32 s40, 0x3f803f80")
        e("v_mov_b32 v22, s40")
        e("s_nop 1")
        for q in range(4):
            e(f"v_cvt_pk_bf16_f32 v20, v{152+4*q}, v{152+4*q+1}")
            e(f"v_cvt_pk_bf16_f32 v21, v{152+4*q+2}, v{152+4*q+3}")
            e("v_cndmask_b32 v20, v20, v22, vcc")
            e("v_cndmask_b32 v21, v21, v22, vcc")
            e("v_cndmask_b32 v20, v20, 0, s[48:49]")
            e("v_cndmask_b32 v21, v21, 0, s[48:49]")
            e(f"s_mov_b32 s40, {OFF_VT-OFF_K4 + (q>>1)*1024 + (q&1)*8}")
            e(f"buffer_store_dwordx2 v[20:21], v16, s[32:35], s40 offen")
            e("s_nop 1")
    e("s_endpgm")

def k1():
    n = "k1_proj_kernel"
    khead(n)
    e("s_cmp_ge_u32 s2, 256")
    e("s_cbranch_scc1 k1_exit")
    e("s_load_dwordx16 s[4:19], s[0:1], 0")
    e("s_load_dwordx2 s[20:21], s[0:1], 80")
    e("s_and_b32 s22, s2, 15")
    e("s_lshr_b32 s23, s2, 4")
    e("s_lshl_b32 s41, s23, 7")
    e("s_waitcnt lgkmcnt(0)")
    e("s_cmp_eq_u32 s22, 4")
    e("s_cbranch_scc1 k1_kv")
    e("s_cmp_gt_u32 s22, 4")
    e("s_cbranch_scc1 k1_b")
    srd(24, 4, 5, 0, 1835008)
    srd(28, 6, 7, 0, 448*448*2)
    srd(32, 20, 21, OFF_Q, 1835008)
    e("s_mov_b32 s36, 896"); e("s_mov_b32 s37, 896"); e("s_lshl_b32 s38, s22, 7"); e("s_mov_b32 s39, 448")
    e("s_branch k1_main")
    lab("k1_b")
    srd(24, 14, 15, 0, 1835008)
    srd(28, 16, 17, 0, 448*1344*2)
    srd(32, 20, 21, OFF_QKVB, 2048*1344*2)
    e("s_mov_b32 s36, 2688"); e("s_mov_b32 s37, 2688"); e("s_sub_u32 s38, s22, 5"); e("s_lshl_b32 s38, s38, 7"); e("s_mov_b32 s39, 1344")
    lab("k1_main")
    gemm_body(False, "k1")
    lab("k1_kv")
    srd(24, 4, 5, 0, 1835008)
    srd(28, 8, 9, 0, 448*56)
    srd(44, 10, 11, 0, 448*56)
    srd(32, 20, 21, OFF_K4, 0x40000)
    gemm_body(True, "k1kv")
    lab("k1_exit")
    e("s_endpgm")
    kd(n)

def k3():
    n = "k3_out_kernel"
    khead(n)
    e("s_cmp_ge_u32 s2, 128")
    e("s_cbranch_scc1 k3_exit")
    e("s_load_dwordx2 s[4:5], s[0:1], 32")
    e("s_load_dwordx2 s[6:7], s[0:1], 56")
    e("s_load_dwordx2 s[8:9], s[0:1], 64")
    e("s_load_dwordx2 s[20:21], s[0:1], 80")
    e("s_and_b32 s22, s2, 3")
    e("s_lshr_b32 s23, s2, 3")
    e("s_lshl_b32 s41, s23, 7")
    e("s_lshl_b32 s38, s22, 7")
    e("s_mov_b32 s36, 896"); e("s_mov_b32 s37, 1792"); e("s_mov_b32 s39, 448")
    e("s_waitcnt lgkmcnt(0)")
    e("s_bitcmp1_b32 s2, 2")
    e("s_cbranch_scc1 k3_b")
    srd(24, 20, 21, OFF_OA, 1835008)
    srd(28, 4, 5, 0, 448*448*2)
    srd(32, 8, 9, 0, 2048*896*2)
    e("s_branch k3_main")
    lab("k3_b")
    srd(24, 20, 21, OFF_OB, 1835008)
    srd(28, 6, 7, 0, 448*448*2)
    srd(32, 8, 9, 896, 2048*896*2 - 896)
    lab("k3_main")
    gemm_body(False, "k3")
    lab("k3_exit")
    e("s_endpgm")
    kd(n)

import struct
def f32hex(x): return "0x%08x" % struct.unpack("<I", struct.pack("<f", x))[0]
SCALE = 28 ** -0.5
CL = SCALE * 1.4426950408889634

def k2():
    n = "k2_attn_kernel"
    khead(n)
    e("s_cmp_ge_u32 s2, 256")
    e("s_cbranch_scc1 k2_exit")
    e("s_load_dwordx2 s[20:21], s[0:1], 80")
    e("s_waitcnt lgkmcnt(0)")
    srd(24, 20, 21, OFF_Q, 1835008)
    srd(28, 20, 21, OFF_K4, 0x40000)
    srd(32, 20, 21, OFF_OA, 1835008)
    e("v_and_b32 v1, 63, v0")
    e("v_lshrrev_b32 v2, 6, v0")
    e("v_and_b32 v3, 31, v1")
    e("v_lshrrev_b32 v4, 5, v1")
    e("v_and_b32 v5, 3, v2")
    e("v_lshrrev_b32 v6, 2, v2")
    e("s_nop 0")
    e("v_readfirstlane_b32 s36, v6")
    e("s_cmp_ge_u32 s36, 2")
    e("s_cbranch_scc1 k2_b")
    e("v_lshrrev_b32 v7, 8, v0")
    e("v_and_b32 v9, 255, v0")
    e("v_lshlrev_b32 v88, 15, v7")
    e("v_lshl_add_u32 v88, v9, 4, v88")
    e("v_lshlrev_b32 v89, 12, v7")
    e("v_lshl_add_u32 v89, v9, 4, v89")
    e("v_lshlrev_b32 v90, 4, v0")
    def loadstage(st):
        for i in range(4):
            e(f"s_mov_b32 s40, {st*4096 + (i>>1)*16384 + (i&1)*65536}")
            e(f"buffer_load_dwordx4 v[{100+4*i}:{103+4*i}], v88, s[28:31], s40 offen")
        for i in range(4):
            e(f"s_mov_b32 s40, {0x20000 + st*16384 + (i>>1)*65536 + (i&1)*8192}")
            e(f"buffer_load_dwordx4 v[{116+4*i}:{119+4*i}], v90, s[28:31], s40 offen")
    def storestage(b):
        e("s_waitcnt vmcnt(0)")
        for i in range(4):
            e(f"ds_write_b128 v89, v[{100+4*i}:{103+4*i}] offset:{(i>>1)*32768 + (i&1)*8192}" if b == 0 else
              f"ds_write_b128 v132, v[{100+4*i}:{103+4*i}] offset:{(i>>1)*32768 + (i&1)*8192}")
        for i in range(4):
            e(f"ds_write_b128 v{90 if b==0 else 133}, v[{116+4*i}:{119+4*i}] offset:{(i>>1)*32768 + 16384 + (i&1)*8192}")
        e("s_waitcnt lgkmcnt(0)")
        e("s_barrier")
    e("v_add_u32 v132, 65536, v89")
    e("v_add_u32 v133, 65536, v90")
    loadstage(0)
    e("s_lshl_b32 s41, s2, 3")
    e("v_lshrrev_b32 v7, 4, v3")
    e("v_lshl_add_u32 v7, v5, 1, v7")
    e("v_add_u32 v7, s41, v7")
    e("s_mov_b32 s40, 896")
    e("v_mul_lo_u32 v7, v7, s40")
    e("v_and_b32 v9, 15, v3")
    e("v_mul_u32_u24 v9, 56, v9")
    e("v_add_u32 v7, v7, v9")
    e("v_lshl_add_u32 v98, v4, 4, v7")
    e("buffer_load_dwordx4 v[8:11], v98, s[24:27], 0 offen")
    e("buffer_load_dwordx4 v[12:15], v98, s[24:27], 0 offen offset:32")
    e("v_cmp_gt_u32 vcc, 32, v1")
    e("s_waitcnt vmcnt(0)")
    e("s_nop 1")
    e("v_cndmask_b32 v14, 0, v14, vcc")
    e("v_cndmask_b32 v15, 0, v15, vcc")
    for r in range(32, 48): e(f"v_mov_b32 v{r}, 0")
    e("v_mov_b32 v91, 0xff800000")
    e("v_lshlrev_b32 v92, 15, v6")
    e("v_lshl_add_u32 v93, v4, 12, v92")
    e("v_lshl_add_u32 v93, v3, 4, v93")
    e("v_lshl_add_u32 v94, v4, 9, v92")
    e("v_lshl_add_u32 v94, v3, 4, v94")
    e("v_add_u32 v94, 16384, v94")
    e("v_add_u32 v98, 65536, v93")
    e("v_add_u32 v99, 65536, v94")
    e(f"s_mov_b32 s42, {f32hex(CL)}")
    storestage(0)
    e("s_mov_b32 s50, 0")
    e("s_mov_b32 s52, 0")
    e("s_mov_b32 s53, 0x20000")
    lab("k2_stage")
    e("s_cmp_ge_u32 s50, 3")
    e("s_cbranch_scc1 k2_noload")
    e("s_add_u32 s52, s52, 4096")
    e("s_add_u32 s53, s53, 16384")
    for i in range(4):
        e(f"s_add_u32 s40, s52, {(i>>1)*16384 + (i&1)*65536}")
        e(f"buffer_load_dwordx4 v[{100+4*i}:{103+4*i}], v88, s[28:31], s40 offen")
    for i in range(4):
        e(f"s_add_u32 s40, s53, {(i>>1)*65536 + (i&1)*8192}")
        e(f"buffer_load_dwordx4 v[{116+4*i}:{119+4*i}], v90, s[28:31], s40 offen")
    lab("k2_noload")
    e("v_mov_b32 v98, v93")
    e("v_mov_b32 v99, v94")
    e("s_mov_b32 s51, 0")
    def rdK(t):
        e(f"ds_read_b128 v[48:51], v98 offset:{t*512}")
        e(f"ds_read_b128 v[52:55], v98 offset:{t*512+8192}")
    def qk(sb):
        e(f"v_mfma_f32_32x32x16_bf16 v[{sb}:{sb+15}], v[48:51], v[8:11], 0")
        e(f"v_mfma_f32_32x32x16_bf16 v[{sb}:{sb+15}], v[52:55], v[12:15], v[{sb}:{sb+15}]")
    rdK(0)
    e("s_waitcnt lgkmcnt(0)")
    qk(16)
    lab("k2_tile")
    for t in range(2):
        cur = [16, 72][t]; nxt = [72, 16][t]
        rdK(t+1)
        e(f"ds_read_b128 v[56:59], v99 offset:{t*2048}")
        e(f"ds_read_b128 v[60:63], v99 offset:{t*2048+1024}")
        e("s_waitcnt lgkmcnt(2)")
        qk(nxt)
        e("s_nop 5")
        e(f"v_max3_f32 v95, v{cur}, v{cur+1}, v{cur+2}")
        for r in range(3, 15, 2):
            e(f"v_max3_f32 v95, v95, v{cur+r}, v{cur+r+1}")
        e(f"v_max_f32 v95, v95, v{cur+15}")
        e("v_mov_b32 v96, v95")
        e("s_nop 1")
        e("v_permlane32_swap_b32 v95, v96")
        e("v_max3_f32 v96, v95, v96, v91")
        e("v_cmp_gt_f32 vcc, v96, v91")
        e("v_sub_f32 v97, v91, v96")
        e("v_mul_f32 v97, s42, v97")
        e("v_exp_f32 v97, v97")
        e("v_mov_b32 v91, v96")
        e("v_mul_f32 v96, s42, v96")
        for r in range(16):
            e(f"v_fma_f32 v{cur+r}, v{cur+r}, s42, -v96")
        for r in range(16):
            e(f"v_exp_f32 v{cur+r}, v{cur+r}")
        for i in range(8):
            e(f"v_cvt_pk_bf16_f32 v{64+i}, v{cur+2*i}, v{cur+2*i+1}")
        e(f"s_cbranch_vccz k2_sk{t}")
        for r in range(32, 48):
            e(f"v_mul_f32 v{r}, v97, v{r}")
        lab(f"k2_sk{t}")
        e("s_waitcnt lgkmcnt(0)")
        e("s_nop 1")
        e("v_mfma_f32_32x32x16_bf16 v[32:47], v[56:59], v[64:67], v[32:47]")
        e("v_mfma_f32_32x32x16_bf16 v[32:47], v[60:63], v[68:71], v[32:47]")
        e("s_nop 7")
    e("v_add_u32 v98, 1024, v98")
    e("v_add_u32 v99, 4096, v99")
    e("s_add_u32 s51, s51, 1")
    e("s_cmp_lt_u32 s51, 4")
    e("s_cbranch_scc1 k2_tile")
    e("s_add_u32 s50, s50, 1")
    e("s_cmp_ge_u32 s50, 4")
    e("s_cbranch_scc1 k2_done")
    e("v_xor_b32 v93, 0x10000, v93")
    e("v_xor_b32 v94, 0x10000, v94")
    e("s_waitcnt vmcnt(0)")
    for i in range(4):
        e(f"ds_write_b128 v132, v[{100+4*i}:{103+4*i}] offset:{(i>>1)*32768 + (i&1)*8192}")
    for i in range(4):
        e(f"ds_write_b128 v133, v[{116+4*i}:{119+4*i}] offset:{(i>>1)*32768 + 16384 + (i&1)*8192}")
    e("v_xor_b32 v132, 0x10000, v132")
    e("v_xor_b32 v133, 0x10000, v133")
    e("s_waitcnt lgkmcnt(0)")
    e("s_barrier")
    e("s_branch k2_stage")
    lab("k2_done")
    e("s_nop 15")
    e("s_barrier")
    e("v_mul_u32_u24 v92, 4352, v5")
    e("v_lshl_add_u32 v92, v1, 2, v92")
    e("s_cmp_eq_u32 s36, 0")
    e("s_cbranch_scc1 k2_low")
    for r in range(16):
        e(f"ds_write_b32 v92, v{32+r} offset:{r*256}")
    e("ds_write_b32 v92, v91 offset:4096")
    e("s_waitcnt lgkmcnt(0)")
    e("s_barrier")
    e("s_endpgm")
    lab("k2_low")
    e("s_barrier")
    for r in range(16):
        e(f"ds_read_b32 v{48+r}, v92 offset:{r*256}")
    e("ds_read_b32 v95, v92 offset:4096")
    e("s_waitcnt lgkmcnt(0)")
    e("v_max_f32 v96, v95, v91")
    e("v_sub_f32 v97, v91, v96")
    e("v_sub_f32 v95, v95, v96")
    e("v_mul_f32 v97, s42, v97")
    e("v_mul_f32 v95, s42, v95")
    e("v_exp_f32 v97, v97")
    e("v_exp_f32 v95, v95")
    e("s_nop 0")
    for r in range(16):
        e(f"v_mul_f32 v{32+r}, v97, v{32+r}")
        e(f"v_fma_f32 v{32+r}, v95, v{48+r}, v{32+r}")
    e("v_mov_b32 v95, v44")
    e("v_mov_b32 v96, v44")
    e("s_nop 1")
    e("v_permlane32_swap_b32 v95, v96")
    e("v_rcp_f32 v96, v96")
    e("s_nop 0")
    for r in range(16):
        e(f"v_mul_f32 v{32+r}, v96, v{32+r}")
    e("v_lshl_add_u32 v7, v4, 3, v7")
    for q in range(4):
        e(f"v_cvt_pk_bf16_f32 v{64+2*q}, v{32+4*q}, v{33+4*q}")
        e(f"v_cvt_pk_bf16_f32 v{65+2*q}, v{34+4*q}, v{35+4*q}")
    for q in range(3):
        e(f"buffer_store_dwordx2 v[{64+2*q}:{65+2*q}], v7, s[32:35], 0 offen offset:{16*q}")
    e("v_cmp_gt_u32 vcc, 32, v1")
    e("v_mov_b32 v9, 0x40000000")
    e("s_nop 1")
    e("v_cndmask_b32 v9, v9, v7, vcc")
    e("buffer_store_dwordx2 v[70:71], v9, s[32:35], 0 offen offset:48")
    e("s_endpgm")
    lab("k2_b")
    srd(24, 20, 21, OFF_QKVB, 2048*1344*2)
    srd(32, 20, 21, OFF_OB, 1835008)
    e("s_lshl_b32 s40, s2, 7")
    e("v_and_b32 v1, 127, v0")
    e("v_add_u32 v1, s40, v1")
    e("v_lshrrev_b32 v2, 4, v1")
    e("v_and_b32 v3, 15, v1")
    e("v_mul_u32_u24 v3, 56, v3")
    e("s_mov_b32 s40, 2688")
    e("v_mul_lo_u32 v4, v2, s40")
    e("v_add_u32 v4, v4, v3")
    for i in range(7):
        e(f"buffer_load_dwordx2 v[{10+2*i}:{11+2*i}], v4, s[24:27], 0 offen offset:{8*i}")
    for w in range(8):
        e(f"v_subrev_u32 v5, {2*w}, v2")
        e("v_max_i32 v5, 0, v5")
        e("v_mul_lo_u32 v5, v5, s40")
        e(f"v_add_u32 v{100+w}, v5, v3")
    for bt in range(2):
        for ww in range(4):
            w = 4*bt + ww
            for i in range(7):
                e(f"buffer_load_dwordx2 v[{44+14*ww+2*i}:{45+14*ww+2*i}], v{100+w}, s[24:27], 0 offen offset:{896+8*i}")
        for ww in range(4):
            w = 4*bt + ww
            e(f"s_waitcnt vmcnt({7*(3-ww)})")
            e(f"v_mov_b32 v{108+w}, 0")
            for i in range(14):
                e(f"v_dot2_f32_bf16 v{108+w}, v{10+i}, v{44+14*ww+i}, v{108+w}")
            e("s_nop 2")
            e(f"v_cvt_pk_bf16_f32 v6, v{108+w}, v{108+w}")
            e("v_lshlrev_b32 v6, 16, v6")
            e(f"v_mul_f32 v6, {f32hex(SCALE)}, v6")
            e("v_cvt_pk_bf16_f32 v6, v6, v6")
            e("v_lshlrev_b32 v6, 16, v6")
            e(f"v_cmp_le_u32 vcc, {2*w}, v2")
            e("v_mov_b32 v7, 0xce6e6b28")
            e("s_nop 1")
            e(f"v_cndmask_b32 v{108+w}, v7, v6, vcc")
        e("s_barrier")
    e("v_max3_f32 v6, v108, v109, v110")
    e("v_max3_f32 v6, v6, v111, v112")
    e("v_max3_f32 v6, v6, v113, v114")
    e("v_max_f32 v6, v6, v115")
    e("v_mov_b32 v7, 0")
    for w in range(8):
        e(f"v_sub_f32 v{108+w}, v{108+w}, v6")
        e(f"v_mul_f32 v{108+w}, 0x3fb8aa3b, v{108+w}")
        e(f"v_exp_f32 v{108+w}, v{108+w}")
        e("s_nop 0")
        e(f"v_add_f32 v7, v7, v{108+w}")
    e("v_rcp_f32 v7, v7")
    e("s_nop 0")
    for w in range(8):
        e(f"v_mul_f32 v{108+w}, v7, v{108+w}")
        e(f"v_cvt_pk_bf16_f32 v{108+w}, v{108+w}, v{108+w}")
        e(f"v_lshlrev_b32 v{108+w}, 16, v{108+w}")
    for i in range(28): e(f"v_mov_b32 v{10+i}, 0")
    for bt in range(2):
        for ww in range(4):
            w = 4*bt + ww
            for i in range(7):
                e(f"buffer_load_dwordx2 v[{44+14*ww+2*i}:{45+14*ww+2*i}], v{100+w}, s[24:27], 0 offen offset:{1792+8*i}")
        for ww in range(4):
            w = 4*bt + ww
            e(f"s_waitcnt vmcnt({7*(3-ww)})")
            for i in range(14):
                e(f"v_lshlrev_b32 v6, 16, v{44+14*ww+i}")
                e(f"v_and_b32 v7, 0xffff0000, v{44+14*ww+i}")
                e(f"v_fmac_f32 v{10+2*i}, v{108+w}, v6")
                e(f"v_fmac_f32 v{11+2*i}, v{108+w}, v7")
        if bt == 0: e("s_barrier")
    e("s_mov_b32 s40, 896")
    e("v_mul_lo_u32 v4, v2, s40")
    e("v_add_u32 v4, v4, v3")
    for i in range(14):
        e(f"v_cvt_pk_bf16_f32 v{44+i}, v{10+2*i}, v{11+2*i}")
    for i in range(7):
        e(f"buffer_store_dwordx2 v[{44+2*i}:{45+2*i}], v4, s[32:35], 0 offen offset:{8*i}")
    lab("k2_exit")
    e("s_endpgm")
    kd(n, 136)

hdr = open(f"cdna_kernels/{NAME}.s.ref").read().split("; Override")[0]
out = hdr
out += f"; @launch kernel=k1_proj_kernel grid=(256,1,1) block=(256,1,1) lds={GEMM_LDS}\n"
out += f"; @launch kernel=k2_attn_kernel grid=(256,1,1) block=(640,1,1) lds=131072\n"
out += f"; @launch kernel=k3_out_kernel grid=(128,1,1) block=(256,1,1) lds={GEMM_LDS}\n"
out += '.amdgcn_target "amdgcn-amd-amdhsa--gfx950"\n.text\n'
k1(); k2(); k3()
out += "\n".join(L) + "\n"
open(f"cdna_kernels/{NAME}.s", "w").write(out)
```

```python
NAME = "concat_heads__grouped_kv_mqa__sliding_local_dilated__prompt"
OFF_Q = 0x0
OFF_K4 = 0x200000
OFF_VT = 0x220000
OFF_QKVB = 0x300000
OFF_OA = 0x900000
OFF_OB = 0xB00000
XS = 464
WS = 272
WBASE = 128 * XS
GEMM_LDS = WBASE + 224 * WS

L = []
def e(s): L.append("    " + s)
def lab(s): L.append(s + ":")

def srd(dst, lo, hi, off, size):
    e(f"s_add_u32 s{dst}, s{lo}, {off:#x}")
    e(f"s_addc_u32 s{dst+1}, s{hi}, 0")
    e(f"s_and_b32 s{dst+1}, s{dst+1}, 0xffff")
    e(f"s_mov_b32 s{dst+2}, {size:#x}")
    e(f"s_mov_b32 s{dst+3}, 0x00020000")

def kd(name, vgpr=256):
    L.append(f""".section .rodata,"a"
.p2align 6
.amdhsa_kernel {name}
  .amdhsa_next_free_vgpr {vgpr}
  .amdhsa_next_free_sgpr 96
  .amdhsa_accum_offset {vgpr}
  .amdhsa_group_segment_fixed_size 0
  .amdhsa_kernarg_size 88
  .amdhsa_user_sgpr_count 2
  .amdhsa_user_sgpr_kernarg_segment_ptr 1
  .amdhsa_system_sgpr_workgroup_id_x 1
.end_amdhsa_kernel
.text""")

def khead(name):
    L.append(f".globl {name}\n.p2align 8\n.type {name},@function\n{name}:")

def gemm_load_stage(stage, kv):
    for i in range(16):
        e(f"s_mov_b32 s40, {i*8*896 + stage*448}")
        e(f"buffer_load_dwordx4 v[{16+4*i}:{19+4*i}], v1, s[24:27], s40 offen")
    if not kv:
        for i in range(14):
            e(f"s_mul_i32 s40, s36, {i*16 + stage*224}")
            e(f"buffer_load_dwordx4 v[{80+4*i}:{83+4*i}], v3, s[28:31], s40 offen")
    else:
        for i in range(14):
            e(f"s_mov_b32 s40, {(i*16 + stage*224)*56}")
            e(f"buffer_load_dword v{80+2*i}, v3, s[28:31], s40 offen")
            e(f"buffer_load_dword v{81+2*i}, v3, s[44:47], s40 offen")

def gemm_store_stage(kv):
    e("s_waitcnt vmcnt(0)")
    e("s_mov_b64 exec, s[42:43]")
    for i in range(16):
        e(f"ds_write_b128 v2, v[{16+4*i}:{19+4*i}] offset:{i*8*XS}")
    e("s_mov_b64 exec, -1")
    if not kv:
        for i in range(14):
            e(f"ds_write_b128 v4, v[{80+4*i}:{83+4*i}] offset:{i*16*WS}")
    else:
        for i in range(14):
            e(f"v_cndmask_b32 v{80+2*i}, 0, v{80+2*i}, s[48:49]")
            e(f"v_cndmask_b32 v{81+2*i}, 0, v{81+2*i}, s[48:49]")
            e(f"ds_write_b32 v4, v{80+2*i} offset:{i*16*WS}")
            e(f"ds_write_b32 v4, v{81+2*i} offset:{i*16*WS+64}")
    e("s_waitcnt lgkmcnt(0)")
    e("s_barrier")

UID = [0]
def gemm_compute(kv):
    UID[0] += 1
    lb = f"gk{UID[0]}"
    def reads(kk, s):
        a = 200 + 16*s; b = a + 8
        e(f"ds_read_b128 v[{a}:{a+3}], v232 offset:{kk*32}")
        if not kv:
            e(f"ds_read_b128 v[{a+4}:{a+7}], v232 offset:{kk*32 + 32*XS}")
        e(f"ds_read_b64_tr_b16 v[{b}:{b+1}], v233 offset:{kk*16*WS}")
        e(f"ds_read_b64_tr_b16 v[{b+2}:{b+3}], v233 offset:{kk*16*WS + 4*WS}")
        e(f"ds_read_b64_tr_b16 v[{b+4}:{b+5}], v233 offset:{kk*16*WS + 64}")
        e(f"ds_read_b64_tr_b16 v[{b+6}:{b+7}], v233 offset:{kk*16*WS + 4*WS + 64}")
    def mm(s):
        a = 200 + 16*s; b = a + 8
        if not kv:
            for tm in range(2):
                for tn in range(2):
                    acc = 136 + 16*(2*tm+tn)
                    e(f"v_mfma_f32_32x32x16_bf16 v[{acc}:{acc+15}], v[{b+4*tn}:{b+4*tn+3}], v[{a+4*tm}:{a+4*tm+3}], v[{acc}:{acc+15}]")
        else:
            e(f"v_mfma_f32_32x32x16_bf16 v[136:151], v[{b}:{b+3}], v[{a}:{a+3}], v[136:151]")
            e(f"v_mfma_f32_32x32x16_bf16 v[152:167], v[{a}:{a+3}], v[{b+4}:{b+7}], v[152:167]")
    nr = 5 if kv else 6
    e("v_mov_b32 v232, v5")
    e("v_mov_b32 v233, v6")
    e("s_mov_b32 s50, 0")
    reads(0, 0)
    lab(lb)
    reads(1, 1)
    e(f"s_waitcnt lgkmcnt({nr})")
    mm(0)
    reads(2, 0)
    e(f"s_waitcnt lgkmcnt({nr})")
    mm(1)
    e("v_add_u32 v232, 64, v232")
    e(f"v_add_u32 v233, {32*WS}, v233")
    e("s_add_u32 s50, s50, 1")
    e("s_cmp_lt_u32 s50, 7")
    e(f"s_cbranch_scc1 {lb}")
    e("s_waitcnt lgkmcnt(0)")

def gemm_body(kv, tag):
    e("v_lshrrev_b32 v7, 5, v0")
    e("v_and_b32 v8, 31, v0")
    e("v_add_u32 v9, s41, v7")
    e("s_mov_b32 s40, 896")
    e("v_mul_lo_u32 v1, v9, s40")
    e("v_lshl_add_u32 v1, v8, 4, v1")
    e(f"s_mov_b32 s40, {XS}")
    e("v_mul_lo_u32 v2, v7, s40")
    e("v_lshl_add_u32 v2, v8, 4, v2")
    e("v_cmp_gt_u32 s[42:43], 28, v8")
    e("v_lshrrev_b32 v7, 4, v0")
    e("v_and_b32 v8, 15, v0")
    e(f"s_mov_b32 s40, {WS}")
    e("v_mul_lo_u32 v4, v7, s40")
    if not kv:
        e("v_mul_lo_u32 v3, v7, s36")
        e("v_lshl_add_u32 v3, v8, 4, v3")
        e("s_lshl_b32 s40, s38, 1")
        e("v_add_u32 v3, s40, v3")
        e("v_lshl_add_u32 v4, v8, 4, v4")
    else:
        e("v_mul_u32_u24 v3, 56, v7")
        e("v_lshl_add_u32 v3, v8, 2, v3")
        e("v_lshl_add_u32 v4, v8, 2, v4")
        e("v_cmp_gt_u32 s[48:49], 14, v8")
    e(f"v_add_u32 v4, {WBASE}, v4")
    gemm_load_stage(0, kv)
    e("v_lshrrev_b32 v7, 6, v0")
    e("v_and_b32 v8, 63, v0")
    e("v_and_b32 v9, 31, v8")
    e("v_lshrrev_b32 v10, 5, v8")
    if not kv:
        e("v_lshrrev_b32 v11, 1, v7")
        e("v_and_b32 v12, 1, v7")
        e("v_lshl_add_u32 v13, v11, 6, v9")
    else:
        e("v_lshl_add_u32 v13, v7, 5, v9")
        e("v_mov_b32 v12, 0")
    e(f"s_mov_b32 s40, {XS}")
    e("v_mul_lo_u32 v5, v13, s40")
    e("v_lshl_add_u32 v5, v10, 4, v5")
    e("v_bfe_u32 v14, v8, 2, 2")
    e("v_lshl_add_u32 v14, v10, 3, v14")
    e(f"s_mov_b32 s40, {WS}")
    e("v_mul_lo_u32 v6, v14, s40")
    e("v_bfe_u32 v14, v8, 4, 1")
    e("v_lshlrev_b32 v14, 5, v14")
    e("v_lshl_add_u32 v14, v12, 7, v14")
    e("v_and_b32 v15, 3, v8")
    e("v_lshl_add_u32 v14, v15, 3, v14")
    e("v_add_u32 v6, v6, v14")
    e(f"v_add_u32 v6, {WBASE}, v6")
    for r in range(136, 200):
        e(f"v_mov_b32 v{r}, 0")
    gemm_store_stage(kv)
    gemm_load_stage(1, kv)
    gemm_compute(kv)
    e("s_barrier")
    gemm_store_stage(kv)
    gemm_compute(kv)
    e("s_nop 15")
    e("s_nop 3")
    if not kv:
        e("v_add_u32 v16, s41, v13")
        e("v_mul_lo_u32 v16, v16, s37")
        e("v_lshlrev_b32 v17, 6, v12")
        e("v_lshl_add_u32 v17, v10, 2, v17")
        e("v_add_u32 v17, s38, v17")
        e("v_lshl_add_u32 v16, v17, 1, v16")
        e("s_lshl_b32 s40, s37, 5")
        for tm in range(2):
            for tn in range(2):
                acc = 136 + 16*(2*tm+tn)
                for q in range(4):
                    e(f"v_cvt_pk_bf16_f32 v20, v{acc+4*q}, v{acc+4*q+1}")
                    e(f"v_cvt_pk_bf16_f32 v21, v{acc+4*q+2}, v{acc+4*q+3}")
                    e(f"v_add_u32 v18, {32*tn+8*q}, v17")
                    e("v_cmp_gt_u32 vcc, s39, v18")
                    e("v_mov_b32 v19, 0x40000000")
                    e("s_nop 1")
                    e("v_cndmask_b32 v19, v19, v16, vcc")
                    so = "s40" if tm else "0"
                    e(f"buffer_store_dwordx2 v[20:21], v19, s[32:35], {so} offen offset:{(32*tn+8*q)*2}")
                    e("s_nop 1")
    else:
        e("v_add_u32 v16, s41, v13")
        e("v_lshlrev_b32 v16, 4, v16")
        e("v_lshl_add_u32 v16, v10, 3, v16")
        for q in range(4):
            e(f"v_cvt_pk_bf16_f32 v20, v{136+4*q}, v{136+4*q+1}")
            e(f"v_cvt_pk_bf16_f32 v21, v{136+4*q+2}, v{136+4*q+3}")
            e(f"s_mov_b32 s40, {q*32768}")
            e(f"buffer_store_dwordx2 v[20:21], v16, s[32:35], s40 offen")
            e("s_nop 1")
        e("v_lshlrev_b32 v16, 5, v7")
        e("v_add_u32 v16, s41, v16")
        e("v_lshlrev_b32 v16, 6, v16")
        e("v_lshl_add_u32 v16, v10, 9, v16")
        e("v_lshl_add_u32 v16, v9, 4, v16")
        e("v_cmp_eq_u32 vcc, 28, v9")
        e("v_cmp_lt_u32 s[48:49], 28, v9")
        e("s_mov_b32 s40, 0x3f803f80")
        e("v_mov_b32 v22, s40")
        e("s_nop 1")
        for q in range(4):
            e(f"v_cvt_pk_bf16_f32 v20, v{152+4*q}, v{152+4*q+1}")
            e(f"v_cvt_pk_bf16_f32 v21, v{152+4*q+2}, v{152+4*q+3}")
            e("v_cndmask_b32 v20, v20, v22, vcc")
            e("v_cndmask_b32 v21, v21, v22, vcc")
            e("v_cndmask_b32 v20, v20, 0, s[48:49]")
            e("v_cndmask_b32 v21, v21, 0, s[48:49]")
            e(f"s_mov_b32 s40, {OFF_VT-OFF_K4 + (q>>1)*1024 + (q&1)*8}")
            e(f"buffer_store_dwordx2 v[20:21], v16, s[32:35], s40 offen")
            e("s_nop 1")
    e("s_endpgm")

def k1():
    n = "k1_proj_kernel"
    khead(n)
    e("s_cmp_ge_u32 s2, 256")
    e("s_cbranch_scc1 k1_exit")
    e("s_load_dwordx16 s[4:19], s[0:1], 0")
    e("s_load_dwordx2 s[20:21], s[0:1], 80")
    e("s_and_b32 s22, s2, 15")
    e("s_lshr_b32 s23, s2, 4")
    e("s_lshl_b32 s41, s23, 7")
    e("s_waitcnt lgkmcnt(0)")
    e("s_cmp_eq_u32 s22, 4")
    e("s_cbranch_scc1 k1_kv")
    e("s_cmp_gt_u32 s22, 4")
    e("s_cbranch_scc1 k1_b")
    srd(24, 4, 5, 0, 1835008)
    srd(28, 6, 7, 0, 448*448*2)
    srd(32, 20, 21, OFF_Q, 1835008)
    e("s_mov_b32 s36, 896"); e("s_mov_b32 s37, 896"); e("s_lshl_b32 s38, s22, 7"); e("s_mov_b32 s39, 448")
    e("s_branch k1_main")
    lab("k1_b")
    srd(24, 14, 15, 0, 1835008)
    srd(28, 16, 17, 0, 448*1344*2)
    srd(32, 20, 21, OFF_QKVB, 2048*1344*2)
    e("s_mov_b32 s36, 2688"); e("s_mov_b32 s37, 2688"); e("s_sub_u32 s38, s22, 5"); e("s_lshl_b32 s38, s38, 7"); e("s_mov_b32 s39, 1344")
    lab("k1_main")
    gemm_body(False, "k1")
    lab("k1_kv")
    srd(24, 4, 5, 0, 1835008)
    srd(28, 8, 9, 0, 448*56)
    srd(44, 10, 11, 0, 448*56)
    srd(32, 20, 21, OFF_K4, 0x40000)
    gemm_body(True, "k1kv")
    lab("k1_exit")
    e("s_endpgm")
    kd(n)

def k3():
    n = "k3_out_kernel"
    khead(n)
    e("s_cmp_ge_u32 s2, 128")
    e("s_cbranch_scc1 k3_exit")
    e("s_load_dwordx2 s[4:5], s[0:1], 32")
    e("s_load_dwordx2 s[6:7], s[0:1], 56")
    e("s_load_dwordx2 s[8:9], s[0:1], 64")
    e("s_load_dwordx2 s[20:21], s[0:1], 80")
    e("s_and_b32 s22, s2, 3")
    e("s_lshr_b32 s23, s2, 3")
    e("s_lshl_b32 s41, s23, 7")
    e("s_lshl_b32 s38, s22, 7")
    e("s_mov_b32 s36, 896"); e("s_mov_b32 s37, 1792"); e("s_mov_b32 s39, 448")
    e("s_waitcnt lgkmcnt(0)")
    e("s_bitcmp1_b32 s2, 2")
    e("s_cbranch_scc1 k3_b")
    srd(24, 20, 21, OFF_OA, 1835008)
    srd(28, 4, 5, 0, 448*448*2)
    srd(32, 8, 9, 0, 2048*896*2)
    e("s_branch k3_main")
    lab("k3_b")
    srd(24, 20, 21, OFF_OB, 1835008)
    srd(28, 6, 7, 0, 448*448*2)
    srd(32, 8, 9, 896, 2048*896*2 - 896)
    lab("k3_main")
    gemm_body(False, "k3")
    lab("k3_exit")
    e("s_endpgm")
    kd(n)

import struct
def f32hex(x): return "0x%08x" % struct.unpack("<I", struct.pack("<f", x))[0]
SCALE = 28 ** -0.5
CL = SCALE * 1.4426950408889634

def k2():
    n = "k2_attn_kernel"
    khead(n)
    e("s_cmp_ge_u32 s2, 256")
    e("s_cbranch_scc1 k2_exit")
    e("s_load_dwordx2 s[20:21], s[0:1], 80")
    e("s_waitcnt lgkmcnt(0)")
    srd(24, 20, 21, OFF_Q, 1835008)
    srd(28, 20, 21, OFF_K4, 0x40000)
    srd(32, 20, 21, OFF_OA, 1835008)
    e("v_and_b32 v1, 63, v0")
    e("v_lshrrev_b32 v2, 6, v0")
    e("v_and_b32 v3, 31, v1")
    e("v_lshrrev_b32 v4, 5, v1")
    e("v_and_b32 v5, 3, v2")
    e("v_lshrrev_b32 v6, 2, v2")
    e("s_nop 0")
    e("v_readfirstlane_b32 s36, v6")
    e("s_cmp_ge_u32 s36, 2")
    e("s_cbranch_scc1 k2_b")
    e("v_lshrrev_b32 v7, 8, v0")
    e("v_and_b32 v9, 255, v0")
    e("v_lshlrev_b32 v88, 15, v7")
    e("v_lshl_add_u32 v88, v9, 4, v88")
    e("v_lshlrev_b32 v89, 12, v7")
    e("v_lshl_add_u32 v89, v9, 4, v89")
    e("v_lshlrev_b32 v90, 4, v0")
    def loadstage(st):
        for i in range(4):
            e(f"s_mov_b32 s40, {st*4096 + (i>>1)*16384 + (i&1)*65536}")
            e(f"buffer_load_dwordx4 v[{100+4*i}:{103+4*i}], v88, s[28:31], s40 offen")
        for i in range(4):
            e(f"s_mov_b32 s40, {0x20000 + st*16384 + (i>>1)*65536 + (i&1)*8192}")
            e(f"buffer_load_dwordx4 v[{116+4*i}:{119+4*i}], v90, s[28:31], s40 offen")
    def storestage(b):
        e("s_waitcnt vmcnt(0)")
        for i in range(4):
            e(f"ds_write_b128 v89, v[{100+4*i}:{103+4*i}] offset:{(i>>1)*32768 + (i&1)*8192}" if b == 0 else
              f"ds_write_b128 v132, v[{100+4*i}:{103+4*i}] offset:{(i>>1)*32768 + (i&1)*8192}")
        for i in range(4):
            e(f"ds_write_b128 v{90 if b==0 else 133}, v[{116+4*i}:{119+4*i}] offset:{(i>>1)*32768 + 16384 + (i&1)*8192}")
        e("s_waitcnt lgkmcnt(0)")
        e("s_barrier")
    e("v_add_u32 v132, 65536, v89")
    e("v_add_u32 v133, 65536, v90")
    loadstage(0)
    e("s_lshl_b32 s41, s2, 3")
    e("v_lshrrev_b32 v7, 4, v3")
    e("v_lshl_add_u32 v7, v5, 1, v7")
    e("v_add_u32 v7, s41, v7")
    e("s_mov_b32 s40, 896")
    e("v_mul_lo_u32 v7, v7, s40")
    e("v_and_b32 v9, 15, v3")
    e("v_mul_u32_u24 v9, 56, v9")
    e("v_add_u32 v7, v7, v9")
    e("v_lshl_add_u32 v98, v4, 4, v7")
    e("buffer_load_dwordx4 v[8:11], v98, s[24:27], 0 offen")
    e("buffer_load_dwordx4 v[12:15], v98, s[24:27], 0 offen offset:32")
    e("v_cmp_gt_u32 vcc, 32, v1")
    e("s_waitcnt vmcnt(0)")
    e("s_nop 1")
    e("v_cndmask_b32 v14, 0, v14, vcc")
    e("v_cndmask_b32 v15, 0, v15, vcc")
    e(f"s_mov_b32 s42, {f32hex(CL)}")
    for r in range(8, 16):
        e(f"v_lshlrev_b32 v95, 16, v{r}")
        e(f"v_and_b32 v96, 0xffff0000, v{r}")
        e("v_mul_f32 v95, s42, v95")
        e("v_mul_f32 v96, s42, v96")
        e(f"v_cvt_pk_bf16_f32 v{r}, v95, v96")
    for r in range(134, 150): e(f"v_mov_b32 v{r}, 0")
    e("s_mov_b32 s54, 1")
    for r in range(32, 48): e(f"v_mov_b32 v{r}, 0")
    e("v_mov_b32 v91, 0")
    e("v_lshlrev_b32 v92, 15, v6")
    e("v_lshl_add_u32 v93, v4, 12, v92")
    e("v_lshl_add_u32 v93, v3, 4, v93")
    e("v_lshl_add_u32 v94, v4, 9, v92")
    e("v_lshl_add_u32 v94, v3, 4, v94")
    e("v_add_u32 v94, 16384, v94")
    e("v_add_u32 v98, 65536, v93")
    e("v_add_u32 v99, 65536, v94")
    e(f"s_mov_b32 s42, {f32hex(CL)}")
    storestage(0)
    e("s_mov_b32 s50, 0")
    e("s_mov_b32 s52, 0")
    e("s_mov_b32 s53, 0x20000")
    lab("k2_stage")
    e("s_cmp_ge_u32 s50, 3")
    e("s_cbranch_scc1 k2_noload")
    e("s_add_u32 s52, s52, 4096")
    e("s_add_u32 s53, s53, 16384")
    for i in range(4):
        e(f"s_add_u32 s40, s52, {(i>>1)*16384 + (i&1)*65536}")
        e(f"buffer_load_dwordx4 v[{100+4*i}:{103+4*i}], v88, s[28:31], s40 offen")
    for i in range(4):
        e(f"s_add_u32 s40, s53, {(i>>1)*65536 + (i&1)*8192}")
        e(f"buffer_load_dwordx4 v[{116+4*i}:{119+4*i}], v90, s[28:31], s40 offen")
    lab("k2_noload")
    e("v_mov_b32 v98, v93")
    e("v_mov_b32 v99, v94")
    e("s_mov_b32 s51, 0")
    def rdK(t):
        e(f"ds_read_b128 v[48:51], v98 offset:{t*512}")
        e(f"ds_read_b128 v[52:55], v98 offset:{t*512+8192}")
    def qk(sb):
        e(f"v_mfma_f32_32x32x16_bf16 v[{sb}:{sb+15}], v[48:51], v[8:11], v[134:149]")
        e(f"v_mfma_f32_32x32x16_bf16 v[{sb}:{sb+15}], v[52:55], v[12:15], v[{sb}:{sb+15}]")
    rdK(0)
    e("s_waitcnt lgkmcnt(0)")
    qk(16)
    lab("k2_tile")
    for t in range(2):
        cur = [16, 72][t]; nxt = [72, 16][t]
        rdK(t+1)
        e(f"ds_read_b128 v[56:59], v99 offset:{t*2048}")
        e(f"ds_read_b128 v[60:63], v99 offset:{t*2048+1024}")
        e("s_waitcnt lgkmcnt(2)")
        qk(nxt)
        e("s_nop 5")
        e(f"v_max3_f32 v95, v{cur}, v{cur+1}, v{cur+2}")
        for r in range(3, 15, 2):
            e(f"v_max3_f32 v95, v95, v{cur+r}, v{cur+r+1}")
        e(f"v_max_f32 v95, v95, v{cur+15}")
        e("v_mov_b32 v96, v95")
        e("s_nop 1")
        e("v_permlane32_swap_b32 v95, v96")
        e("v_max_f32 v96, v95, v96")
        e("v_cmp_lt_f32 vcc, 0x41000000, v96")
        e("s_cmp_lg_u32 s54, 0")
        e(f"s_cbranch_scc1 k2_rare{t}")
        e(f"s_cbranch_vccz k2_sk{t}")
        e("v_max_f32 v96, 0, v96")
        lab(f"k2_rare{t}")
        e("s_mov_b32 s54, 0")
        e("s_nop 7")
        e("v_sub_f32 v97, 0, v96")
        e("v_exp_f32 v97, v97")
        e("v_add_f32 v91, v91, v96")
        for r in range(16):
            e(f"v_sub_f32 v{cur+r}, v{cur+r}, v96")
        for r in range(16):
            e(f"v_sub_f32 v{nxt+r}, v{nxt+r}, v96")
        for r in range(32, 48):
            e(f"v_mul_f32 v{r}, v97, v{r}")
        for r in range(134, 150):
            e(f"v_sub_f32 v{r}, 0, v91")
        lab(f"k2_sk{t}")
        for r in range(16):
            e(f"v_exp_f32 v{cur+r}, v{cur+r}")
        e("s_nop 0")
        for i in range(8):
            e(f"v_cvt_pk_bf16_f32 v{64+i}, v{cur+2*i}, v{cur+2*i+1}")
        e("s_waitcnt lgkmcnt(0)")
        e("s_nop 1")
        e("v_mfma_f32_32x32x16_bf16 v[32:47], v[56:59], v[64:67], v[32:47]")
        e("v_mfma_f32_32x32x16_bf16 v[32:47], v[60:63], v[68:71], v[32:47]")
        e("s_nop 7")
    e("v_add_u32 v98, 1024, v98")
    e("v_add_u32 v99, 4096, v99")
    e("s_add_u32 s51, s51, 1")
    e("s_cmp_lt_u32 s51, 4")
    e("s_cbranch_scc1 k2_tile")
    e("s_add_u32 s50, s50, 1")
    e("s_cmp_ge_u32 s50, 4")
    e("s_cbranch_scc1 k2_done")
    e("v_xor_b32 v93, 0x10000, v93")
    e("v_xor_b32 v94, 0x10000, v94")
    e("s_waitcnt vmcnt(0)")
    for i in range(4):
        e(f"ds_write_b128 v132, v[{100+4*i}:{103+4*i}] offset:{(i>>1)*32768 + (i&1)*8192}")
    for i in range(4):
        e(f"ds_write_b128 v133, v[{116+4*i}:{119+4*i}] offset:{(i>>1)*32768 + 16384 + (i&1)*8192}")
    e("v_xor_b32 v132, 0x10000, v132")
    e("v_xor_b32 v133, 0x10000, v133")
    e("s_waitcnt lgkmcnt(0)")
    e("s_barrier")
    e("s_branch k2_stage")
    lab("k2_done")
    e("s_nop 15")
    e("s_barrier")
    e("v_mul_u32_u24 v92, 4352, v5")
    e("v_lshl_add_u32 v92, v1, 2, v92")
    e("s_cmp_eq_u32 s36, 0")
    e("s_cbranch_scc1 k2_low")
    for r in range(16):
        e(f"ds_write_b32 v92, v{32+r} offset:{r*256}")
    e("ds_write_b32 v92, v91 offset:4096")
    e("s_waitcnt lgkmcnt(0)")
    e("s_barrier")
    e("s_endpgm")
    lab("k2_low")
    e("s_barrier")
    for r in range(16):
        e(f"ds_read_b32 v{48+r}, v92 offset:{r*256}")
    e("ds_read_b32 v95, v92 offset:4096")
    e("s_waitcnt lgkmcnt(0)")
    e("v_max_f32 v96, v95, v91")
    e("v_sub_f32 v97, v91, v96")
    e("v_sub_f32 v95, v95, v96")
    e("v_exp_f32 v97, v97")
    e("v_exp_f32 v95, v95")
    e("s_nop 0")
    for r in range(16):
        e(f"v_mul_f32 v{32+r}, v97, v{32+r}")
        e(f"v_fma_f32 v{32+r}, v95, v{48+r}, v{32+r}")
    e("v_mov_b32 v95, v44")
    e("v_mov_b32 v96, v44")
    e("s_nop 1")
    e("v_permlane32_swap_b32 v95, v96")
    e("v_rcp_f32 v96, v96")
    e("s_nop 0")
    for r in range(16):
        e(f"v_mul_f32 v{32+r}, v96, v{32+r}")
    e("v_lshl_add_u32 v7, v4, 3, v7")
    for q in range(4):
        e(f"v_cvt_pk_bf16_f32 v{64+2*q}, v{32+4*q}, v{33+4*q}")
        e(f"v_cvt_pk_bf16_f32 v{65+2*q}, v{34+4*q}, v{35+4*q}")
    for q in range(3):
        e(f"buffer_store_dwordx2 v[{64+2*q}:{65+2*q}], v7, s[32:35], 0 offen offset:{16*q}")
    e("v_cmp_gt_u32 vcc, 32, v1")
    e("v_mov_b32 v9, 0x40000000")
    e("s_nop 1")
    e("v_cndmask_b32 v9, v9, v7, vcc")
    e("buffer_store_dwordx2 v[70:71], v9, s[32:35], 0 offen offset:48")
    e("s_endpgm")
    lab("k2_b")
    srd(24, 20, 21, OFF_QKVB, 2048*1344*2)
    srd(32, 20, 21, OFF_OB, 1835008)
    e("s_lshl_b32 s40, s2, 7")
    e("v_and_b32 v1, 127, v0")
    e("v_add_u32 v1, s40, v1")
    e("v_lshrrev_b32 v2, 4, v1")
    e("v_and_b32 v3, 15, v1")
    e("v_mul_u32_u24 v3, 56, v3")
    e("s_mov_b32 s40, 2688")
    e("v_mul_lo_u32 v4, v2, s40")
    e("v_add_u32 v4, v4, v3")
    for i in range(7):
        e(f"buffer_load_dwordx2 v[{10+2*i}:{11+2*i}], v4, s[24:27], 0 offen offset:{8*i}")
    for w in range(8):
        e(f"v_subrev_u32 v5, {2*w}, v2")
        e("v_max_i32 v5, 0, v5")
        e("v_mul_lo_u32 v5, v5, s40")
        e(f"v_add_u32 v{100+w}, v5, v3")
    for bt in range(2):
        for ww in range(4):
            w = 4*bt + ww
            for i in range(7):
                e(f"buffer_load_dwordx2 v[{44+14*ww+2*i}:{45+14*ww+2*i}], v{100+w}, s[24:27], 0 offen offset:{896+8*i}")
        for ww in range(4):
            w = 4*bt + ww
            e(f"s_waitcnt vmcnt({7*(3-ww)})")
            e(f"v_mov_b32 v{108+w}, 0")
            for i in range(14):
                e(f"v_dot2_f32_bf16 v{108+w}, v{10+i}, v{44+14*ww+i}, v{108+w}")
            e("s_nop 2")
            e(f"v_cvt_pk_bf16_f32 v6, v{108+w}, v{108+w}")
            e("v_lshlrev_b32 v6, 16, v6")
            e(f"v_mul_f32 v6, {f32hex(SCALE)}, v6")
            e("v_cvt_pk_bf16_f32 v6, v6, v6")
            e("v_lshlrev_b32 v6, 16, v6")
            e(f"v_cmp_le_u32 vcc, {2*w}, v2")
            e("v_mov_b32 v7, 0xce6e6b28")
            e("s_nop 1")
            e(f"v_cndmask_b32 v{108+w}, v7, v6, vcc")
        e("s_barrier")
    e("v_max3_f32 v6, v108, v109, v110")
    e("v_max3_f32 v6, v6, v111, v112")
    e("v_max3_f32 v6, v6, v113, v114")
    e("v_max_f32 v6, v6, v115")
    e("v_mov_b32 v7, 0")
    for w in range(8):
        e(f"v_sub_f32 v{108+w}, v{108+w}, v6")
        e(f"v_mul_f32 v{108+w}, 0x3fb8aa3b, v{108+w}")
        e(f"v_exp_f32 v{108+w}, v{108+w}")
        e("s_nop 0")
        e(f"v_add_f32 v7, v7, v{108+w}")
    e("v_rcp_f32 v7, v7")
    e("s_nop 0")
    for w in range(8):
        e(f"v_mul_f32 v{108+w}, v7, v{108+w}")
        e(f"v_cvt_pk_bf16_f32 v{108+w}, v{108+w}, v{108+w}")
        e(f"v_lshlrev_b32 v{108+w}, 16, v{108+w}")
    for i in range(28): e(f"v_mov_b32 v{10+i}, 0")
    for bt in range(2):
        for ww in range(4):
            w = 4*bt + ww
            for i in range(7):
                e(f"buffer_load_dwordx2 v[{44+14*ww+2*i}:{45+14*ww+2*i}], v{100+w}, s[24:27], 0 offen offset:{1792+8*i}")
        for ww in range(4):
            w = 4*bt + ww
            e(f"s_waitcnt vmcnt({7*(3-ww)})")
            for i in range(14):
                e(f"v_lshlrev_b32 v6, 16, v{44+14*ww+i}")
                e(f"v_and_b32 v7, 0xffff0000, v{44+14*ww+i}")
                e(f"v_fmac_f32 v{10+2*i}, v{108+w}, v6")
                e(f"v_fmac_f32 v{11+2*i}, v{108+w}, v7")
        if bt == 0: e("s_barrier")
    e("s_mov_b32 s40, 896")
    e("v_mul_lo_u32 v4, v2, s40")
    e("v_add_u32 v4, v4, v3")
    for i in range(14):
        e(f"v_cvt_pk_bf16_f32 v{44+i}, v{10+2*i}, v{11+2*i}")
    for i in range(7):
        e(f"buffer_store_dwordx2 v[{44+2*i}:{45+2*i}], v4, s[32:35], 0 offen offset:{8*i}")
    lab("k2_exit")
    e("s_endpgm")
    kd(n, 152)

hdr = open(f"cdna_kernels/{NAME}.s.ref").read().split("; Override")[0]
out = hdr
out += f"; @launch kernel=k1_proj_kernel grid=(256,1,1) block=(256,1,1) lds={GEMM_LDS}\n"
out += f"; @launch kernel=k2_attn_kernel grid=(256,1,1) block=(640,1,1) lds=131072\n"
out += f"; @launch kernel=k3_out_kernel grid=(128,1,1) block=(256,1,1) lds={GEMM_LDS}\n"
out += '.amdgcn_target "amdgcn-amd-amdhsa--gfx950"\n.text\n'
k1(); k2(); k3()
out += "\n".join(L) + "\n"
open(f"cdna_kernels/{NAME}.s", "w").write(out)
```
